```python
import torch

def _softmax(x, axis=-1):
    return torch.softmax(x, dim=axis)
def _gelu(x):
    return torch.nn.functional.gelu(x, approximate="tanh")
def _silu(x):
    return torch.nn.functional.silu(x)
def _sigmoid(x):
    return torch.sigmoid(x)
def _layernorm(x, axis=-1, eps=1e-5):
    m = x.mean(dim=axis, keepdim=True)
    v = x.var(dim=axis, keepdim=True, unbiased=False)
    return (x - m) / torch.sqrt(v + eps)
def _scatter_add(tgt, idx, src, axis=0):
    return tgt.clone().index_add_(axis, idx, src)
def _segment_sum(src, seg, n):
    out = torch.zeros((n,) + src.shape[1:], dtype=src.dtype)
    return out.index_add_(0, seg, src)
def _pad(x, pw):
    flat = tuple(v for pair in reversed(pw) for v in pair)
    return torch.nn.functional.pad(x, flat)

kernel_name = 'standalone__swiglu_ffn__sampling'

def setup_inputs():

    _w = (lambda a: (lambda t: t.to(torch.bfloat16) if t.is_floating_point() else t)(torch.as_tensor(a)))
    B, S, D, F = 8, 16, 1024, 3584
    return {
        "x": _w((lambda *s: torch.randn(*s, dtype=torch.bfloat16) * 0.05)(B, S, D)),
        "w_gate": _w((lambda *s: torch.randn(*s, dtype=torch.bfloat16) * 0.05)(D, F)),
        "w_up": _w((lambda *s: torch.randn(*s, dtype=torch.bfloat16) * 0.05)(D, F)),
        "w_down": _w((lambda *s: torch.randn(*s, dtype=torch.bfloat16) * 0.05)(F, D)),
    }

def reference(x, w_gate, w_up, w_down):
    g = _silu(x @ w_gate)
    u = x @ w_up
    return (g * u) @ w_down
```

```python
class Asm:
    def __init__(self):
        self.lines = []
    def __call__(self, s=""):
        for l in s.split("\n"):
            self.lines.append(l)
    def I(self, s):
        self.lines.append("    " + s)
    def L(self, name):
        self.lines.append(name + ":")
    def C(self, s):
        self.lines.append("    ; " + s)
    def text(self):
        return "\n".join(self.lines) + "\n"

def vr(a, n=1):
    return f"v{a}" if n == 1 else f"v[{a}:{a+n-1}]"
def ar(a, n=1):
    return f"a{a}" if n == 1 else f"a[{a}:{a+n-1}]"
def sr(a, n=1):
    return f"s{a}" if n == 1 else f"s[{a}:{a+n-1}]"

HEADER_COMMENT = """; Kernarg layout for this problem (56 bytes, ptrs only, base s[0:1]):
"""

def kernel_begin(a, name):
    a(f".globl {name}")
    a(".p2align 8")
    a(f".type {name},@function")
    a(f"{name}:")

def descriptor(name, vgpr, sgpr, accum, extra=""):
    return f""".amdhsa_kernel {name}
  .amdhsa_next_free_vgpr {vgpr}
  .amdhsa_next_free_sgpr {sgpr}
  .amdhsa_accum_offset {accum}
  .amdhsa_group_segment_fixed_size 0
  .amdhsa_kernarg_size 56
  .amdhsa_user_sgpr_count 2
  .amdhsa_user_sgpr_kernarg_segment_ptr 1
  .amdhsa_system_sgpr_workgroup_id_x 1
  .amdhsa_float_denorm_mode_32 3
{extra}.end_amdhsa_kernel
"""

DESIGN_COMMENT = """;
"""
```

```python
import sys
from asmlib import *

def srd(a, d, base, nbytes):
    a.I(f"s_mov_b32 s{d}, s{base}")
    a.I(f"s_and_b32 s{d+1}, s{base+1}, 0xffff")
    a.I(f"s_mov_b32 s{d+2}, {nbytes}")
    a.I(f"s_mov_b32 s{d+3}, 0x20000")

XB = 128*1024*2
WB = 1024*3584*2
HB = 128*3584*2

def gen_k1(a, R=4):
    name = "ffn_p1_kernel"
    kernel_begin(a, name)
    a.I("s_cmp_ge_u32 s2, 224")
    a.I("s_cbranch_scc1 P1_DONE")
    a.I("s_load_dwordx4 s[4:7], s[0:1], 0")
    a.I("s_load_dwordx2 s[8:9], s[0:1], 16")
    a.I("s_load_dwordx2 s[10:11], s[0:1], 48")
    a.I("s_and_b32 s14, s2, 7")
    a.I("s_lshr_b32 s15, s2, 3")
    a.I("s_mul_i32 s14, s14, 7")
    a.I("s_lshr_b32 s16, s15, 2")
    a.I("s_add_u32 s14, s14, s16")
    a.I("s_lshl_b32 s14, s14, 1")
    a.I("s_and_b32 s16, s15, 1")
    a.I("s_add_u32 s12, s14, s16")
    a.I("s_bfe_u32 s13, s15, 0x10001")
    a.I("v_lshrrev_b32 v1, 6, v0")
    a.I("v_and_b32 v0, 63, v0")
    a.I("v_readfirstlane_b32 s17, v1")
    a.I("s_nop 3")
    a.I("s_lshr_b32 s18, s17, 1")
    a.I("s_and_b32 s19, s17, 1")
    a.I("s_lshl_b32 s44, s13, 6")
    a.I("s_lshl_b32 s45, s19, 5")
    a.I("s_add_u32 s44, s44, s45")
    a.I("s_lshl_b32 s44, s44, 11")
    a.I("s_lshl_b32 s45, s18, 7")
    a.I("s_add_u32 s44, s44, s45")
    a.I("v_lshrrev_b32 v10, 3, v0")
    a.I("v_lshlrev_b32 v10, 11, v10")
    a.I("v_add_u32 v10, s44, v10")
    a.I("v_lshrrev_b32 v11, 4, v0")
    a.I("v_and_b32 v12, 7, v0")
    for i in range(4):
        a.I(f"v_add_u32 v13, {4*i}, v11")
        a.I("v_and_b32 v13, 7, v13")
        a.I("v_xor_b32 v13, v13, v12")
        a.I("v_lshlrev_b32 v13, 4, v13")
        a.I(f"v_add_u32 v13, {i*(8*2048-1024)}, v13")
        a.I(f"v_add_u32 v{2+i}, v13, v10")
    a.I("s_mul_i32 s44, s17, %d" % (32*7168))
    a.I("s_lshl_b32 s45, s12, 6")
    a.I("s_add_u32 s44, s44, s45")
    a.I("v_lshrrev_b32 v10, 2, v0")
    a.I("v_mul_u32_u24 v10, 7168, v10")
    a.I("v_and_b32 v11, 3, v0")
    a.I("v_lshlrev_b32 v11, 4, v11")
    a.I("v_add3_u32 v6, v10, v11, s44")
    a.I(f"v_add_u32 v7, {16*7168-1024}, v6")
    a.I("v_and_b32 v10, 31, v0")
    a.I("v_lshrrev_b32 v11, 5, v0")
    a.I("v_bfe_u32 v12, v0, 1, 3")
    a.I("v_xor_b32 v12, v12, v11")
    a.I("v_lshlrev_b32 v12, 4, v12")
    a.I("v_lshl_add_u32 v12, v10, 7, v12")
    a.I("s_lshl_b32 s44, s17, 12")
    a.I("v_add_u32 v16, s44, v12")
    for t in range(1, 4):
        a.I(f"v_xor_b32 v{16+t}, {t*32}, v16")
    for g in range(1, 3):
        for t in range(4):
            a.I(f"v_add_u32 v{16+4*g+t}, {65536*g}, v{16+t}")
    a.I("v_bfe_u32 v12, v0, 2, 2")
    a.I("v_lshlrev_b32 v12, 6, v12")
    a.I("v_lshl_add_u32 v12, v11, 9, v12")
    a.I("v_bfe_u32 v13, v0, 4, 1")
    a.I("v_lshl_add_u32 v12, v13, 5, v12")
    a.I("v_and_b32 v13, 3, v0")
    a.I("v_lshl_add_u32 v12, v13, 3, v12")
    a.I("s_lshl_b32 s44, s18, 12")
    a.I("s_add_u32 s44, s44, 16384")
    a.I("v_add_u32 v28, s44, v12")
    a.I("v_add_u32 v29, 65536, v28")
    a.I("v_add_u32 v30, 131072, v28")
    a.I("s_lshl_b32 s46, s17, 12")
    a.I("s_lshl_b32 s47, s17, 11")
    a.I("s_add_u32 s47, s47, 16384")
    for i in range(96, 128):
        a.I(f"v_mov_b32 v{i}, 0")
    a.I("s_waitcnt lgkmcnt(0)")
    srd(a, 20, 4, XB)
    srd(a, 24, 6, WB)
    srd(a, 28, 8, WB)
    srd(a, 32, 10, HB)

    def dma_chunk(c):
        slot = (c % R) * 32768
        ops = []
        ops.append([f"s_add_u32 m0, s47, {slot}", f"s_mov_b32 s48, {c*128*7168}",
                    "buffer_load_dwordx4 v6, s[24:27], s48 offen lds"])
        ops.append(["buffer_load_dwordx4 v7, s[24:27], s48 offen offset:1024 lds"])
        ops.append([f"s_add_u32 m0, s47, {slot+8192}", "s_nop 0",
                    "buffer_load_dwordx4 v6, s[28:31], s48 offen lds"])
        ops.append(["buffer_load_dwordx4 v7, s[28:31], s48 offen offset:1024 lds"])
        ops.append([f"s_add_u32 m0, s46, {slot}", f"s_mov_b32 s49, {c*256}",
                    "buffer_load_dwordx4 v2, s[20:23], s49 offen lds"])
        for i in range(1, 4):
            ops.append([f"buffer_load_dwordx4 v{2+i}, s[20:23], s49 offen offset:{1024*i} lds"])
        return ops

    NC = 8
    for c in range(R-1):
        for op in dma_chunk(c):
            for s in op: a.I(s)
    FR = 32
    def reads(c, t):
        slot = c % R
        g, lo = slot // 2, (slot % 2) * 32768
        f = FR + 12*t
        a.I(f"ds_read_b128 v[{f}:{f+3}], v{16+4*g+t} offset:{lo}")
        a.I(f"ds_read_b64_tr_b16 v[{f+4}:{f+5}], v{28+g} offset:{lo+t*1024}")
        a.I(f"ds_read_b64_tr_b16 v[{f+6}:{f+7}], v{28+g} offset:{lo+t*1024+256}")
        a.I(f"ds_read_b64_tr_b16 v[{f+8}:{f+9}], v{28+g} offset:{lo+t*1024+8192}")
        a.I(f"ds_read_b64_tr_b16 v[{f+10}:{f+11}], v{28+g} offset:{lo+t*1024+8192+256}")
    def mfma(t, which):
        f = FR + 12*t
        if which == 0:
            a.I(f"v_mfma_f32_32x32x16_bf16 v[96:111], v[{f+4}:{f+7}], v[{f}:{f+3}], v[96:111]")
        else:
            a.I(f"v_mfma_f32_32x32x16_bf16 v[112:127], v[{f+8}:{f+11}], v[{f}:{f+3}], v[112:127]")
    for c in range(NC):
        inflight_after = min(R-2, NC-1-c)
        a.C(f"---- chunk {c}")
        a.I(f"s_waitcnt vmcnt({8*inflight_after})")
        a.I("s_barrier")
        nxt = c + R - 1
        ops = dma_chunk(nxt) if nxt < NC else []
        ops = list(ops)
        def pop(n):
            for _ in range(n):
                if ops:
                    for s in ops.pop(0): a.I(s)
        reads(c, 0); reads(c, 1); reads(c, 2)
        pop(2)
        a.I("s_waitcnt lgkmcnt(10)")
        mfma(0, 0); pop(1); mfma(0, 1)
        reads(c, 3)
        pop(1)
        a.I("s_waitcnt lgkmcnt(10)")
        mfma(1, 0); pop(1); mfma(1, 1); pop(1)
        a.I("s_waitcnt lgkmcnt(5)")
        mfma(2, 0); pop(1); mfma(2, 1); pop(1)
        a.I("s_waitcnt lgkmcnt(0)")
        mfma(3, 0); mfma(3, 1)
        assert not ops
    ex = ((NC) % R) * 32768
    assert (NC % R) != ((NC-1) % R)
    a.C("epilogue")
    a.I("v_lshlrev_b32 v10, 4, v0")
    a.I("s_lshl_b32 s44, s17, 12")
    a.I(f"s_add_u32 s44, s44, {ex}")
    a.I("v_add_u32 v11, s44, v10")
    a.I("s_xor_b32 s45, s17, 2")
    a.I("s_lshl_b32 s45, s45, 12")
    a.I(f"s_add_u32 s45, s45, {ex}")
    a.I("v_add_u32 v12, s45, v10")
    a.I("s_lshl_b32 s44, s13, 2")
    a.I("s_lshl_b32 s45, s19, 1")
    a.I("s_add_u32 s44, s44, s45")
    a.I("s_mul_i32 s44, s44, 112")
    a.I("s_add_u32 s44, s44, s12")
    a.I("s_lshl_b32 s44, s44, 10")
    a.I("s_lshl_b32 s45, s18, 9")
    a.I("s_add_u32 s44, s44, s45")
    a.I("v_bfe_u32 v13, v0, 4, 1")
    a.I("v_mul_u32_u24 v13, %d, v13" % (112*1024))
    a.I("v_lshrrev_b32 v14, 5, v0")
    a.I("v_lshl_add_u32 v13, v14, 8, v13")
    a.I("v_and_b32 v14, 15, v0")
    a.I("v_lshl_add_u32 v13, v14, 4, v13")
    a.I("v_add_u32 v13, s44, v13")
    a.I("s_cmp_eq_u32 s18, 0")
    a.I("s_nop 7")
    a.I("s_cbranch_scc1 P1_KH0")
    a.I("ds_write_b128 v11, v[96:99]")
    a.I("ds_write_b128 v11, v[100:103] offset:1024")
    a.I("ds_write_b128 v11, v[112:115] offset:2048")
    a.I("ds_write_b128 v11, v[116:119] offset:3072")
    a.I("s_waitcnt lgkmcnt(0)")
    for i in range(8):
        a.I(f"v_mov_b32 v{96+i}, v{104+i}")
        a.I(f"v_mov_b32 v{112+i}, v{120+i}")
    a.I("s_branch P1_J")
    a.L("P1_KH0")
    a.I("ds_write_b128 v11, v[104:107]")
    a.I("ds_write_b128 v11, v[108:111] offset:1024")
    a.I("ds_write_b128 v11, v[120:123] offset:2048")
    a.I("ds_write_b128 v11, v[124:127] offset:3072")
    a.I("s_waitcnt lgkmcnt(0)")
    a.L("P1_J")
    a.I("s_barrier")
    a.I("ds_read_b128 v[32:35], v12")
    a.I("ds_read_b128 v[36:39], v12 offset:1024")
    a.I("ds_read_b128 v[40:43], v12 offset:2048")
    a.I("ds_read_b128 v[44:47], v12 offset:3072")
    a.I("s_mov_b32 s44, 0xbfb8aa3b")
    a.I("s_waitcnt lgkmcnt(2)")
    for i in range(8):
        a.I(f"v_add_f32 v{96+i}, v{96+i}, v{32+i}")
    for i in range(8):
        a.I(f"v_mul_f32 v{48+i}, s44, v{96+i}")
    for i in range(8):
        a.I(f"v_exp_f32 v{48+i}, v{48+i}")
    a.I("s_waitcnt lgkmcnt(0)")
    for i in range(8):
        a.I(f"v_add_f32 v{112+i}, v{112+i}, v{40+i}")
    for i in range(8):
        a.I(f"v_add_f32 v{48+i}, 1.0, v{48+i}")
    for i in range(8):
        a.I(f"v_rcp_f32 v{48+i}, v{48+i}")
    for i in range(8):
        a.I(f"v_mul_f32 v{96+i}, v{96+i}, v{112+i}")
    for i in range(8):
        a.I(f"v_mul_f32 v{96+i}, v{96+i}, v{48+i}")
    for i in range(4):
        a.I(f"v_cvt_pk_bf16_f32 v{56+i}, v{96+2*i}, v{97+2*i}")
    a.I("buffer_store_dwordx4 v[56:59], v13, s[32:35], 0 offen")
    a.L("P1_DONE")
    a.I("s_endpgm")
    return name, R*32768

def gen_k2(a):
    name = "ffn_p2_kernel"
    kernel_begin(a, name)
    a.I("s_cmp_ge_u32 s2, 256")
    a.I("s_cbranch_scc1 P2_DONE")
    a.I("s_load_dwordx4 s[4:7], s[0:1], 24")
    a.I("s_load_dwordx2 s[10:11], s[0:1], 48")
    a.I("s_and_b32 s14, s2, 7")
    a.I("s_lshr_b32 s15, s2, 3")
    a.I("s_lshl_b32 s14, s14, 2")
    a.I("s_and_b32 s16, s15, 3")
    a.I("s_add_u32 s12, s14, s16")
    a.I("s_lshr_b32 s13, s15, 2")
    a.I("v_lshrrev_b32 v1, 6, v0")
    a.I("v_and_b32 v0, 63, v0")
    a.I("v_readfirstlane_b32 s17, v1")
    a.I("s_nop 3")
    a.I("s_mul_i32 s44, s13, 112")
    a.I("s_mul_i32 s45, s17, 28")
    a.I("s_add_u32 s44, s44, s45")
    a.I("s_lshl_b32 s44, s44, 10")
    a.I("v_lshlrev_b32 v10, 4, v0")
    a.I("v_add_u32 v2, s44, v10")
    a.I("s_mul_i32 s44, s17, %d" % (896*2048))
    a.I("s_lshl_b32 s45, s12, 6")
    a.I("s_add_u32 s44, s44, s45")
    a.I("v_lshrrev_b32 v11, 2, v0")
    a.I("v_lshlrev_b32 v11, 11, v11")
    a.I("v_bfe_u32 v12, v0, 4, 1")
    a.I("v_lshlrev_b32 v12, 1, v12")
    a.I("v_and_b32 v13, 3, v0")
    a.I("v_xor_b32 v12, v12, v13")
    a.I("v_lshlrev_b32 v12, 4, v12")
    a.I("v_add3_u32 v4, v11, v12, s44")
    for i in range(1, 4):
        a.I(f"v_add_u32 v{4+i}, {i*(32768-1024)}, v4")
    a.I("v_bfe_u32 v11, v0, 5, 1")
    a.I("v_bfe_u32 v12, v0, 4, 1")
    a.I("v_bfe_u32 v13, v0, 2, 2")
    a.I("v_and_b32 v14, 3, v0")
    a.I("v_lshlrev_b32 v11, 10, v11")
    a.I("v_lshl_add_u32 v11, v12, 8, v11")
    a.I("v_lshl_add_u32 v11, v13, 6, v11")
    a.I("v_lshl_add_u32 v11, v12, 5, v11")
    a.I("v_lshl_add_u32 v11, v14, 3, v11")
    a.I("s_mul_i32 s46, s17, 40960")
    a.I("v_add_u32 v8, s46, v11")
    a.I("v_xor_b32 v9, 32, v8")
    for i in range(16, 24):
        a.I(f"v_mov_b32 v{i}, 0")
    a.I("s_waitcnt lgkmcnt(0)")
    srd(a, 20, 4, WB)
    srd(a, 24, 6, XB)
    srd(a, 32, 10, HB)
    HF = 64
    for i in range(28):
        if i % 4 == 0:
            a.I(f"s_mov_b32 s48, {i*1024}")
        a.I(f"buffer_load_dwordx4 v[{HF+4*i}:{HF+4*i+3}], v2, s[32:35], s48 offen offset:{(i%4)*1024}")
    def dma_group(g):
        slot = (g % 5) * 8192
        for half in range(2):
            a.I(f"s_add_u32 m0, s46, {slot + half*4096}")
            a.I(f"s_mov_b32 s48, {(g*8+half*4)*32768}")
            for i in range(4):
                a.I(f"buffer_load_dwordx4 v{4+i}, s[20:23], s48 offen offset:{1024*i} lds")
    for g in range(4):
        dma_group(g)
    WF = 24
    for g in range(7):
        a.C(f"group {g}")
        a.I(f"s_waitcnt vmcnt({8*min(3, 6-g)})")
        slot = (g % 5) * 8192
        def rd(kb):
            f = WF + 8*kb
            o = slot + kb*2048
            a.I(f"ds_read_b64_tr_b16 v[{f}:{f+1}], v8 offset:{o}")
            a.I(f"ds_read_b64_tr_b16 v[{f+2}:{f+3}], v8 offset:{o+512}")
            a.I(f"ds_read_b64_tr_b16 v[{f+4}:{f+5}], v9 offset:{o}")
            a.I(f"ds_read_b64_tr_b16 v[{f+6}:{f+7}], v9 offset:{o+512}")
        rd(0); rd(1); rd(2)
        if g + 4 < 7:
            dma_group(g + 4)
        for kb in range(4):
            f = WF + 8*kb
            hf = HF + 4*(4*g + kb)
            a.I(f"s_waitcnt lgkmcnt({[8,8,4,0][kb]})")
            a.I(f"v_mfma_f32_16x16x32_bf16 v[16:19], v[{f}:{f+3}], v[{hf}:{hf+3}], v[16:19]")
            a.I(f"v_mfma_f32_16x16x32_bf16 v[20:23], v[{f+4}:{f+7}], v[{hf}:{hf+3}], v[20:23]")
            if kb == 0:
                rd(3)
    a.I("v_lshlrev_b32 v10, 4, v0")
    a.I("v_add_u32 v11, s46, v10")
    a.I("s_nop 7")
    a.I("ds_write_b128 v11, v[16:19]")
    a.I("ds_write_b128 v11, v[20:23] offset:1024")
    a.I("s_waitcnt lgkmcnt(0)")
    a.I("s_barrier")
    a.I("s_cmp_ge_u32 s17, 2")
    a.I("s_cbranch_scc1 P2_DONE")
    a.I("s_lshl_b32 s44, s17, 10")
    a.I("v_add_u32 v11, s44, v10")
    a.I("v_add_u32 v12, %d, v11" % (2*40960))
    a.I("ds_read_b128 v[24:27], v11")
    a.I("ds_read_b128 v[28:31], v11 offset:40960")
    a.I("ds_read_b128 v[32:35], v12")
    a.I("ds_read_b128 v[36:39], v12 offset:40960")
    a.I("s_lshl_b32 s44, s13, 15")
    a.I("s_lshl_b32 s45, s12, 6")
    a.I("s_add_u32 s44, s44, s45")
    a.I("s_lshl_b32 s45, s17, 5")
    a.I("s_add_u32 s44, s44, s45")
    a.I("v_and_b32 v13, 15, v0")
    a.I("v_lshlrev_b32 v13, 11, v13")
    a.I("v_lshrrev_b32 v14, 4, v0")
    a.I("v_lshl_add_u32 v13, v14, 3, v13")
    a.I("v_add_u32 v13, s44, v13")
    a.I("s_waitcnt lgkmcnt(2)")
    for i in range(4):
        a.I(f"v_add_f32 v{24+i}, v{24+i}, v{28+i}")
    a.I("s_waitcnt lgkmcnt(0)")
    for i in range(4):
        a.I(f"v_add_f32 v{32+i}, v{32+i}, v{36+i}")
    for i in range(4):
        a.I(f"v_add_f32 v{24+i}, v{24+i}, v{32+i}")
    a.I("v_cvt_pk_bf16_f32 v28, v24, v25")
    a.I("v_cvt_pk_bf16_f32 v29, v26, v27")
    a.I("buffer_store_dwordx2 v[28:29], v13, s[24:27], 0 offen")
    a.L("P2_DONE")
    a.I("s_endpgm")
    return name, 163840

def gen_empty(a, name):
    kernel_begin(a, name)
    a.I("s_endpgm")

def main(out, R=4, extra_empty=0):
    body = Asm()
    body('.amdgcn_target "amdgcn-amd-amdhsa--gfx950"')
    body(".text")
    n1, l1 = gen_k1(body, R)
    n2, l2 = gen_k2(body)
    if extra_empty:
        gen_empty(body, "ffn_empty_kernel")
    body('.section .rodata,"a"')
    body(".p2align 6")
    body(descriptor(n1, 128, 64, 128))
    body(".p2align 6")
    body(descriptor(n2, 176, 64, 176))
    if extra_empty:
        body(".p2align 6")
        body(descriptor("ffn_empty_kernel", 8, 16, 8))
    hdr = HEADER_COMMENT
    hdr += f"; @launch kernel={n1} grid=(224,1,1) block=(256,1,1) lds={l1}\n"
    for i in range(extra_empty):
        hdr += f"; @launch kernel=ffn_empty_kernel grid=(256,1,1) block=(256,1,1) lds=0\n"
    hdr += f"; @launch kernel={n2} grid=(256,1,1) block=(256,1,1) lds={l2}\n"
    open(out, "w").write(hdr + body.text())

if __name__ == "__main__":
    main("standalone__swiglu_ffn__sampling.s", 4, 0)
    main("v1_r5.s", 5, 0)
    main("v1_e1.s", 4, 1)
    main("v1_e2.s", 4, 2)
```

```python
import sys
from asmlib import *

def srd(a, d, base, nbytes):
    a.I(f"s_mov_b32 s{d}, s{base}")
    a.I(f"s_and_b32 s{d+1}, s{base+1}, 0xffff")
    a.I(f"s_mov_b32 s{d+2}, {nbytes}")
    a.I(f"s_mov_b32 s{d+3}, 0x20000")

XB = 128*1024*2
WB = 1024*3584*2
HB = 128*3584*2

def gen_k1(a, R=4):
    name = "ffn_p1_kernel"
    kernel_begin(a, name)
    a.I("s_cmp_ge_u32 s2, 224")
    a.I("s_cbranch_scc1 P1_DONE")
    a.I("s_load_dwordx4 s[4:7], s[0:1], 0")
    a.I("s_load_dwordx2 s[8:9], s[0:1], 16")
    a.I("s_load_dwordx2 s[10:11], s[0:1], 48")
    a.I("s_and_b32 s14, s2, 7")
    a.I("s_lshr_b32 s15, s2, 3")
    a.I("s_mul_i32 s14, s14, 7")
    a.I("s_lshr_b32 s16, s15, 2")
    a.I("s_add_u32 s14, s14, s16")
    a.I("s_lshl_b32 s14, s14, 1")
    a.I("s_and_b32 s16, s15, 1")
    a.I("s_add_u32 s12, s14, s16")
    a.I("s_bfe_u32 s13, s15, 0x10001")
    a.I("v_lshrrev_b32 v1, 6, v0")
    a.I("v_and_b32 v0, 63, v0")
    a.I("v_readfirstlane_b32 s17, v1")
    a.I("s_nop 3")
    a.I("s_lshr_b32 s18, s17, 1")
    a.I("s_and_b32 s19, s17, 1")
    a.I("s_lshl_b32 s44, s13, 6")
    a.I("s_lshl_b32 s45, s19, 5")
    a.I("s_add_u32 s44, s44, s45")
    a.I("s_lshl_b32 s44, s44, 11")
    a.I("s_lshl_b32 s45, s18, 7")
    a.I("s_add_u32 s44, s44, s45")
    a.I("v_lshrrev_b32 v10, 3, v0")
    a.I("v_lshlrev_b32 v10, 11, v10")
    a.I("v_add_u32 v10, s44, v10")
    a.I("v_lshrrev_b32 v11, 4, v0")
    a.I("v_and_b32 v12, 7, v0")
    for i in range(4):
        a.I(f"v_add_u32 v13, {4*i}, v11")
        a.I("v_and_b32 v13, 7, v13")
        a.I("v_xor_b32 v13, v13, v12")
        a.I("v_lshlrev_b32 v13, 4, v13")
        a.I(f"v_add_u32 v13, {i*(8*2048-1024)}, v13")
        a.I(f"v_add_u32 v{2+i}, v13, v10")
    a.I("s_mul_i32 s44, s17, %d" % (32*7168))
    a.I("s_lshl_b32 s45, s12, 6")
    a.I("s_add_u32 s44, s44, s45")
    a.I("v_lshrrev_b32 v10, 2, v0")
    a.I("v_mul_u32_u24 v10, 7168, v10")
    a.I("v_and_b32 v11, 3, v0")
    a.I("v_lshlrev_b32 v11, 4, v11")
    a.I("v_add3_u32 v6, v10, v11, s44")
    a.I(f"v_add_u32 v7, {16*7168-1024}, v6")
    a.I("v_and_b32 v10, 31, v0")
    a.I("v_lshrrev_b32 v11, 5, v0")
    a.I("v_bfe_u32 v12, v0, 1, 3")
    a.I("v_xor_b32 v12, v12, v11")
    a.I("v_lshlrev_b32 v12, 4, v12")
    a.I("v_lshl_add_u32 v12, v10, 7, v12")
    a.I("s_lshl_b32 s44, s17, 12")
    a.I("v_add_u32 v16, s44, v12")
    for t in range(1, 4):
        a.I(f"v_xor_b32 v{16+t}, {t*32}, v16")
    for g in range(1, 3):
        for t in range(4):
            a.I(f"v_add_u32 v{16+4*g+t}, {65536*g}, v{16+t}")
    a.I("v_bfe_u32 v12, v0, 2, 2")
    a.I("v_lshlrev_b32 v12, 6, v12")
    a.I("v_lshl_add_u32 v12, v11, 9, v12")
    a.I("v_bfe_u32 v13, v0, 4, 1")
    a.I("v_lshl_add_u32 v12, v13, 5, v12")
    a.I("v_and_b32 v13, 3, v0")
    a.I("v_lshl_add_u32 v12, v13, 3, v12")
    a.I("s_lshl_b32 s44, s18, 12")
    a.I("s_add_u32 s44, s44, 16384")
    a.I("v_add_u32 v28, s44, v12")
    a.I("v_add_u32 v29, 65536, v28")
    a.I("v_add_u32 v30, 131072, v28")
    a.I("s_lshl_b32 s46, s17, 12")
    a.I("s_lshl_b32 s47, s17, 11")
    a.I("s_add_u32 s47, s47, 16384")
    for i in range(96, 128):
        a.I(f"v_mov_b32 v{i}, 0")
    a.I("s_waitcnt lgkmcnt(0)")
    srd(a, 20, 4, XB)
    srd(a, 24, 6, WB)
    srd(a, 28, 8, WB)
    srd(a, 32, 10, HB)

    def dma_chunk(c):
        slot = (c % R) * 32768
        ops = []
        ops.append([f"s_add_u32 m0, s47, {slot}", f"s_mov_b32 s48, {c*128*7168}",
                    "buffer_load_dwordx4 v6, s[24:27], s48 offen lds"])
        ops.append(["buffer_load_dwordx4 v7, s[24:27], s48 offen offset:1024 lds"])
        ops.append([f"s_add_u32 m0, s47, {slot+8192}", "s_nop 0",
                    "buffer_load_dwordx4 v6, s[28:31], s48 offen lds"])
        ops.append(["buffer_load_dwordx4 v7, s[28:31], s48 offen offset:1024 lds"])
        ops.append([f"s_add_u32 m0, s46, {slot}", f"s_mov_b32 s49, {c*256}",
                    "buffer_load_dwordx4 v2, s[20:23], s49 offen lds"])
        for i in range(1, 4):
            ops.append([f"buffer_load_dwordx4 v{2+i}, s[20:23], s49 offen offset:{1024*i} lds"])
        return ops

    NC = 8
    for c in range(R-1):
        for op in dma_chunk(c):
            for s in op: a.I(s)
    FR = 32
    def reads(c, t):
        slot = c % R
        g, lo = slot // 2, (slot % 2) * 32768
        f = FR + 12*t
        a.I(f"ds_read_b128 v[{f}:{f+3}], v{16+4*g+t} offset:{lo}")
        a.I(f"ds_read_b64_tr_b16 v[{f+4}:{f+5}], v{28+g} offset:{lo+t*1024}")
        a.I(f"ds_read_b64_tr_b16 v[{f+6}:{f+7}], v{28+g} offset:{lo+t*1024+256}")
        a.I(f"ds_read_b64_tr_b16 v[{f+8}:{f+9}], v{28+g} offset:{lo+t*1024+8192}")
        a.I(f"ds_read_b64_tr_b16 v[{f+10}:{f+11}], v{28+g} offset:{lo+t*1024+8192+256}")
    def mfma(t, which):
        f = FR + 12*t
        if which == 0:
            a.I(f"v_mfma_f32_32x32x16_bf16 v[96:111], v[{f+4}:{f+7}], v[{f}:{f+3}], v[96:111]")
        else:
            a.I(f"v_mfma_f32_32x32x16_bf16 v[112:127], v[{f+8}:{f+11}], v[{f}:{f+3}], v[112:127]")
    for c in range(NC):
        inflight_after = min(R-2, NC-1-c)
        a.C(f"---- chunk {c}")
        a.I(f"s_waitcnt vmcnt({8*inflight_after})")
        a.I("s_barrier")
        nxt = c + R - 1
        ops = dma_chunk(nxt) if nxt < NC else []
        ops = list(ops)
        def pop(n):
            for _ in range(n):
                if ops:
                    for s in ops.pop(0): a.I(s)
        reads(c, 0); reads(c, 1); reads(c, 2)
        pop(2)
        a.I("s_waitcnt lgkmcnt(10)")
        mfma(0, 0); pop(1); mfma(0, 1)
        reads(c, 3)
        pop(1)
        a.I("s_waitcnt lgkmcnt(10)")
        mfma(1, 0); pop(1); mfma(1, 1); pop(1)
        a.I("s_waitcnt lgkmcnt(5)")
        mfma(2, 0); pop(1); mfma(2, 1); pop(1)
        a.I("s_waitcnt lgkmcnt(0)")
        mfma(3, 0); mfma(3, 1)
        assert not ops
    ex = ((NC) % R) * 32768
    assert (NC % R) != ((NC-1) % R)
    a.C("epilogue")
    a.I("v_lshlrev_b32 v10, 4, v0")
    a.I("s_lshl_b32 s44, s17, 12")
    a.I(f"s_add_u32 s44, s44, {ex}")
    a.I("v_add_u32 v11, s44, v10")
    a.I("s_xor_b32 s45, s17, 2")
    a.I("s_lshl_b32 s45, s45, 12")
    a.I(f"s_add_u32 s45, s45, {ex}")
    a.I("v_add_u32 v12, s45, v10")
    a.I("s_lshl_b32 s44, s13, 2")
    a.I("s_lshl_b32 s45, s19, 1")
    a.I("s_add_u32 s44, s44, s45")
    a.I("s_mul_i32 s44, s44, 112")
    a.I("s_add_u32 s44, s44, s12")
    a.I("s_lshl_b32 s44, s44, 10")
    a.I("s_lshl_b32 s45, s18, 9")
    a.I("s_add_u32 s44, s44, s45")
    a.I("v_bfe_u32 v13, v0, 4, 1")
    a.I("v_mul_u32_u24 v13, %d, v13" % (112*1024))
    a.I("v_lshrrev_b32 v14, 5, v0")
    a.I("v_lshl_add_u32 v13, v14, 8, v13")
    a.I("v_and_b32 v14, 15, v0")
    a.I("v_lshl_add_u32 v13, v14, 4, v13")
    a.I("v_add_u32 v13, s44, v13")
    a.I("s_cmp_eq_u32 s18, 0")
    a.I("s_nop 7")
    a.I("s_cbranch_scc1 P1_KH0")
    a.I("ds_write_b128 v11, v[96:99]")
    a.I("ds_write_b128 v11, v[100:103] offset:1024")
    a.I("ds_write_b128 v11, v[112:115] offset:2048")
    a.I("ds_write_b128 v11, v[116:119] offset:3072")
    a.I("s_waitcnt lgkmcnt(0)")
    for i in range(8):
        a.I(f"v_mov_b32 v{96+i}, v{104+i}")
        a.I(f"v_mov_b32 v{112+i}, v{120+i}")
    a.I("s_branch P1_J")
    a.L("P1_KH0")
    a.I("ds_write_b128 v11, v[104:107]")
    a.I("ds_write_b128 v11, v[108:111] offset:1024")
    a.I("ds_write_b128 v11, v[120:123] offset:2048")
    a.I("ds_write_b128 v11, v[124:127] offset:3072")
    a.I("s_waitcnt lgkmcnt(0)")
    a.L("P1_J")
    a.I("s_barrier")
    a.I("ds_read_b128 v[32:35], v12")
    a.I("ds_read_b128 v[36:39], v12 offset:1024")
    a.I("ds_read_b128 v[40:43], v12 offset:2048")
    a.I("ds_read_b128 v[44:47], v12 offset:3072")
    a.I("s_mov_b32 s44, 0xbfb8aa3b")
    a.I("s_waitcnt lgkmcnt(2)")
    for i in range(8):
        a.I(f"v_add_f32 v{96+i}, v{96+i}, v{32+i}")
    for i in range(8):
        a.I(f"v_mul_f32 v{48+i}, s44, v{96+i}")
    for i in range(8):
        a.I(f"v_exp_f32 v{48+i}, v{48+i}")
    a.I("s_waitcnt lgkmcnt(0)")
    for i in range(8):
        a.I(f"v_add_f32 v{112+i}, v{112+i}, v{40+i}")
    for i in range(8):
        a.I(f"v_add_f32 v{48+i}, 1.0, v{48+i}")
    for i in range(8):
        a.I(f"v_rcp_f32 v{48+i}, v{48+i}")
    for i in range(8):
        a.I(f"v_mul_f32 v{96+i}, v{96+i}, v{112+i}")
    for i in range(8):
        a.I(f"v_mul_f32 v{96+i}, v{96+i}, v{48+i}")
    for i in range(4):
        a.I(f"v_cvt_pk_bf16_f32 v{56+i}, v{96+2*i}, v{97+2*i}")
    a.I("buffer_store_dwordx4 v[56:59], v13, s[32:35], 0 offen")
    a.L("P1_DONE")
    a.I("s_endpgm")
    return name, R*32768

def gen_k2(a):
    name = "ffn_p2_kernel"
    kernel_begin(a, name)
    a.I("s_cmp_ge_u32 s2, 256")
    a.I("s_cbranch_scc1 P2_DONE")
    a.I("s_load_dwordx4 s[4:7], s[0:1], 24")
    a.I("s_load_dwordx2 s[10:11], s[0:1], 48")
    a.I("s_and_b32 s14, s2, 7")
    a.I("s_lshr_b32 s15, s2, 3")
    a.I("s_lshl_b32 s14, s14, 2")
    a.I("s_and_b32 s16, s15, 3")
    a.I("s_add_u32 s12, s14, s16")
    a.I("s_lshr_b32 s13, s15, 2")
    a.I("v_lshrrev_b32 v1, 6, v0")
    a.I("v_and_b32 v0, 63, v0")
    a.I("v_readfirstlane_b32 s17, v1")
    a.I("s_nop 3")
    a.I("s_mul_i32 s44, s13, 112")
    a.I("s_mul_i32 s45, s17, 28")
    a.I("s_add_u32 s44, s44, s45")
    a.I("s_lshl_b32 s44, s44, 10")
    a.I("v_lshlrev_b32 v10, 4, v0")
    a.I("v_add_u32 v2, s44, v10")
    a.I("s_mul_i32 s44, s17, %d" % (896*2048))
    a.I("s_lshl_b32 s45, s12, 6")
    a.I("s_add_u32 s44, s44, s45")
    a.I("v_lshrrev_b32 v11, 2, v0")
    a.I("v_lshlrev_b32 v11, 11, v11")
    a.I("v_bfe_u32 v12, v0, 4, 1")
    a.I("v_lshlrev_b32 v12, 1, v12")
    a.I("v_and_b32 v13, 3, v0")
    a.I("v_xor_b32 v12, v12, v13")
    a.I("v_lshlrev_b32 v12, 4, v12")
    a.I("v_add3_u32 v4, v11, v12, s44")
    for i in range(1, 4):
        a.I(f"v_add_u32 v{4+i}, {i*(32768-1024)}, v4")
    a.I("v_bfe_u32 v11, v0, 5, 1")
    a.I("v_bfe_u32 v12, v0, 4, 1")
    a.I("v_bfe_u32 v13, v0, 2, 2")
    a.I("v_and_b32 v14, 3, v0")
    a.I("v_lshlrev_b32 v11, 10, v11")
    a.I("v_lshl_add_u32 v11, v12, 8, v11")
    a.I("v_lshl_add_u32 v11, v13, 6, v11")
    a.I("v_lshl_add_u32 v11, v12, 5, v11")
    a.I("v_lshl_add_u32 v11, v14, 3, v11")
    a.I("s_mul_i32 s46, s17, 40960")
    a.I("v_add_u32 v8, s46, v11")
    a.I("v_xor_b32 v9, 32, v8")
    for i in range(16, 24):
        a.I(f"v_mov_b32 v{i}, 0")
    a.I("s_waitcnt lgkmcnt(0)")
    srd(a, 20, 4, WB)
    srd(a, 24, 6, XB)
    srd(a, 32, 10, HB)
    HF = 64
    for i in range(28):
        if i % 4 == 0:
            a.I(f"s_mov_b32 s48, {i*1024}")
        a.I(f"buffer_load_dwordx4 v[{HF+4*i}:{HF+4*i+3}], v2, s[32:35], s48 offen offset:{(i%4)*1024}")
    def dma_group(g):
        slot = (g % 5) * 8192
        for half in range(2):
            a.I(f"s_add_u32 m0, s46, {slot + half*4096}")
            a.I(f"s_mov_b32 s48, {(g*8+half*4)*32768}")
            for i in range(4):
                a.I(f"buffer_load_dwordx4 v{4+i}, s[20:23], s48 offen offset:{1024*i} lds")
    for g in range(4):
        dma_group(g)
    WF = 24
    for g in range(7):
        a.C(f"group {g}")
        a.I(f"s_waitcnt vmcnt({8*min(3, 6-g)})")
        slot = (g % 5) * 8192
        def rd(kb):
            f = WF + 8*kb
            o = slot + kb*2048
            a.I(f"ds_read_b64_tr_b16 v[{f}:{f+1}], v8 offset:{o}")
            a.I(f"ds_read_b64_tr_b16 v[{f+2}:{f+3}], v8 offset:{o+512}")
            a.I(f"ds_read_b64_tr_b16 v[{f+4}:{f+5}], v9 offset:{o}")
            a.I(f"ds_read_b64_tr_b16 v[{f+6}:{f+7}], v9 offset:{o+512}")
        rd(0); rd(1); rd(2)
        if g + 4 < 7:
            dma_group(g + 4)
        for kb in range(4):
            f = WF + 8*kb
            hf = HF + 4*(4*g + kb)
            a.I(f"s_waitcnt lgkmcnt({[8,8,4,0][kb]})")
            a.I(f"v_mfma_f32_16x16x32_bf16 v[16:19], v[{f}:{f+3}], v[{hf}:{hf+3}], v[16:19]")
            a.I(f"v_mfma_f32_16x16x32_bf16 v[20:23], v[{f+4}:{f+7}], v[{hf}:{hf+3}], v[20:23]")
            if kb == 0:
                rd(3)
    a.I("v_lshlrev_b32 v10, 4, v0")
    a.I("v_add_u32 v11, s46, v10")
    a.I("s_nop 7")
    a.I("ds_write_b128 v11, v[16:19]")
    a.I("ds_write_b128 v11, v[20:23] offset:1024")
    a.I("s_waitcnt lgkmcnt(0)")
    a.I("s_barrier")
    a.I("s_cmp_ge_u32 s17, 2")
    a.I("s_cbranch_scc1 P2_DONE")
    a.I("s_lshl_b32 s44, s17, 10")
    a.I("v_add_u32 v11, s44, v10")
    a.I("v_add_u32 v12, %d, v11" % (2*40960))
    a.I("ds_read_b128 v[24:27], v11")
    a.I("ds_read_b128 v[28:31], v11 offset:40960")
    a.I("ds_read_b128 v[32:35], v12")
    a.I("ds_read_b128 v[36:39], v12 offset:40960")
    a.I("s_lshl_b32 s44, s13, 15")
    a.I("s_lshl_b32 s45, s12, 6")
    a.I("s_add_u32 s44, s44, s45")
    a.I("s_lshl_b32 s45, s17, 5")
    a.I("s_add_u32 s44, s44, s45")
    a.I("v_and_b32 v13, 15, v0")
    a.I("v_lshlrev_b32 v13, 11, v13")
    a.I("v_lshrrev_b32 v14, 4, v0")
    a.I("v_lshl_add_u32 v13, v14, 3, v13")
    a.I("v_add_u32 v13, s44, v13")
    a.I("s_waitcnt lgkmcnt(2)")
    for i in range(4):
        a.I(f"v_add_f32 v{24+i}, v{24+i}, v{28+i}")
    a.I("s_waitcnt lgkmcnt(0)")
    for i in range(4):
        a.I(f"v_add_f32 v{32+i}, v{32+i}, v{36+i}")
    for i in range(4):
        a.I(f"v_add_f32 v{24+i}, v{24+i}, v{32+i}")
    a.I("v_cvt_pk_bf16_f32 v28, v24, v25")
    a.I("v_cvt_pk_bf16_f32 v29, v26, v27")
    a.I("buffer_store_dwordx2 v[28:29], v13, s[24:27], 0 offen")
    a.L("P2_DONE")
    a.I("s_endpgm")
    return name, 163840

def gen_empty(a, name):
    kernel_begin(a, name)
    a.I("s_endpgm")

def main(out, R=4, seq="12"):
    body = Asm()
    body('.amdgcn_target "amdgcn-amd-amdhsa--gfx950"')
    body(".text")
    n1, l1 = gen_k1(body, R)
    n2, l2 = gen_k2(body)
    if "e" in seq:
        gen_empty(body, "ffn_empty_kernel")
    body('.section .rodata,"a"')
    body(".p2align 6")
    body(descriptor(n1, 128, 64, 128))
    body(".p2align 6")
    body(descriptor(n2, 176, 64, 176))
    if "e" in seq:
        body(".p2align 6")
        body(descriptor("ffn_empty_kernel", 8, 16, 8))
    hdr = HEADER_COMMENT
    for ch in seq:
        if ch == "1":
            hdr += f"; @launch kernel={n1} grid=(224,1,1) block=(256,1,1) lds={l1}\n"
        elif ch == "e":
            hdr += f"; @launch kernel=ffn_empty_kernel grid=(256,1,1) block=(256,1,1) lds=0\n"
        else:
            hdr += f"; @launch kernel={n2} grid=(256,1,1) block=(256,1,1) lds={l2}\n"
    open(out, "w").write(hdr + body.text())

if __name__ == "__main__":
    for seq in ["12", "112", "122", "e12", "1212", "12e"]:
        main(f"v1_{seq}.s", 4, seq)
```

```python
import sys
from asmlib import *

XB = 128*1024*2
WB = 1024*3584*2
HB = 128*3584*2
FLAG_OFF = 1 << 20
WS_BYTES = FLAG_OFF + 112*128
SPIN_MAX = 200000

class Opt:
    stamps = False
    duty = 0
    name = "standalone__swiglu_ffn__sampling_kernel"
    NST = 16

def gen(out, o):
    a = Asm()
    a('.amdgcn_target "amdgcn-amd-amdhsa--gfx950"')
    a(".text")
    name = o.name
    kernel_begin(a, name)
    def stamp(i):
        if not o.stamps: return
        a.I("s_memrealtime s[58:59]")
        a.I("s_waitcnt lgkmcnt(0)")
        a.I(f"s_mov_b32 s{64+i}, s58")
    def stamp_flush(lab):
        if not o.stamps: return
        a.I("s_waitcnt vmcnt(0)")
        stamp(o.NST-1)
        a.I("s_mov_b32 s62, 0x10000000")
        a.I("s_mov_b32 s60, s32")
        a.I("s_mov_b32 s61, s33")
        a.I("s_mov_b32 s63, 0x20000")
        a.I(f"s_mul_i32 s56, s2, {o.NST*4}")
        a.I(f"s_add_u32 s56, s56, {64<<20}")
        a.I("v_mov_b32 v1, 0")
        for i in range(o.NST):
            a.I(f"v_mov_b32 v2, s{64+i}")
            a.I(f"buffer_store_dword v2, v1, s[60:63], s56 offen offset:{4*i}")
    if o.stamps:
        a.I("s_memrealtime s[58:59]")
    a.I("s_load_dwordx2 s[20:21], s[0:1], 0")
    a.I("s_load_dwordx2 s[24:25], s[0:1], 8")
    a.I("s_load_dwordx2 s[28:29], s[0:1], 16")
    a.I("s_load_dwordx2 s[36:37], s[0:1], 24")
    a.I("s_load_dwordx2 s[40:41], s[0:1], 32")
    a.I("s_load_dwordx2 s[44:45], s[0:1], 40")
    a.I("s_load_dwordx2 s[32:33], s[0:1], 48")
    a.I("s_cmp_ge_u32 s2, 256")
    a.I("s_cbranch_scc1 DONE")
    a.I("s_getpc_b64 s[4:5]")
    a.L("PCREF")
    a.I("v_lshlrev_b32 v2, 7, v0")
    a.I("v_min_u32 v2, (CODE_END-PCREF-4), v2")
    a.I("v_lshrrev_b32 v1, 6, v0")
    a.I("global_load_dword v255, v2, s[4:5]")
    a.I("v_readfirstlane_b32 s17, v1")
    a.I("v_and_b32 v0, 63, v0")
    a.I("s_and_b32 s14, s2, 7")
    a.I("s_lshr_b32 s15, s2, 3")
    a.I(f"s_mov_b32 s22, {XB}")
    a.I("s_mov_b32 s23, 0x20000")
    a.I(f"s_mov_b32 s26, {WB}")
    a.I("s_mov_b32 s27, 0x20000")
    a.I(f"s_mov_b32 s30, {WB}")
    a.I("s_mov_b32 s31, 0x20000")
    a.I(f"s_mov_b32 s34, {WS_BYTES}")
    a.I("s_mov_b32 s35, 0x20000")
    a.I("v_lshrrev_b32 v10, 3, v0")
    a.I("v_and_b32 v11, 7, v0")
    a.I("v_lshrrev_b32 v12, 4, v0")
    if o.stamps:
        for i in range(o.NST): a.I(f"s_mov_b32 s{64+i}, 0")
    a.I("s_cmp_ge_u32 s15, 14")
    a.I("s_cbranch_scc1 NOT_WORKER")
    a.I("s_mul_i32 s12, s14, 7")
    a.I("s_lshr_b32 s13, s15, 1")
    a.I("s_add_u32 s12, s12, s13")
    a.I("s_and_b32 s13, s15, 1")
    a.I("s_cmp_lt_u32 s17, 4")
    a.I("s_cbranch_scc1 W_COMPUTE")
    a.I("s_sub_u32 s17, s17, 4")
    a.I(f"s_mul_i32 s46, s17, {16*7168}")
    a.I("s_lshl_b32 s47, s12, 7")
    a.I("s_add_u32 s46, s46, s47")
    a.I("v_and_b32 v13, 1, v12")
    a.I("v_lshlrev_b32 v13, 2, v13")
    a.I("v_xor_b32 v13, v13, v11")
    a.I("v_lshlrev_b32 v13, 4, v13")
    a.I("v_mul_u32_u24 v14, 7168, v10")
    a.I("v_add3_u32 v2, v13, v14, s46")
    a.I(f"v_add_u32 v3, {8*7168-1024}, v2")
    a.I("s_lshl_b32 s46, s13, 17")
    a.I("s_lshl_b32 s47, s17, 15")
    a.I("s_add_u32 s46, s46, s47")
    a.I("v_xor_b32 v13, v12, v11")
    a.I("v_lshlrev_b32 v13, 4, v13")
    a.I("v_lshlrev_b32 v14, 11, v10")
    a.I("v_add3_u32 v4, v13, v14, s46")
    a.I("v_xor_b32 v5, 64, v4")
    a.I(f"v_add_u32 v5, {8*2048-1024}, v5")
    a.I("s_lshl_b32 s46, s17, 11")
    a.I("s_lshl_b32 s13, s13, 1")
    a.I("s_waitcnt lgkmcnt(0)")
    if o.stamps: a.I("s_mov_b32 s64, s58")
    R = 4
    def dma(t):
        slot = (t % R) * 24576
        a.I(f"s_xor_b32 s47, s13, {t}")
        a.I(f"s_add_u32 m0, s46, {slot + 8192}")
        a.I(f"s_mul_i32 s48, s47, {64*7168}")
        a.I("buffer_load_dwordx4 v2, s[24:27], s48 offen lds")
        a.I("buffer_load_dwordx4 v3, s[24:27], s48 offen offset:1024 lds")
        a.I(f"s_add_u32 m0, s46, {slot + 16384}")
        a.I("s_lshl_b32 s49, s47, 7")
        a.I("buffer_load_dwordx4 v2, s[28:31], s48 offen lds")
        a.I("buffer_load_dwordx4 v3, s[28:31], s48 offen offset:1024 lds")
        a.I(f"s_add_u32 m0, s46, {slot}")
        a.I("s_nop 0")
        a.I("buffer_load_dwordx4 v4, s[20:23], s49 offen lds")
        a.I("buffer_load_dwordx4 v5, s[20:23], s49 offen offset:1024 lds")
    for t in range(R-1): dma(t)
    for t in range(16):
        a.I(f"s_waitcnt vmcnt({6*min(R-2, 15-t)})")
        a.I("s_barrier")
        if t + R - 1 < 16: dma(t + R - 1)
    a.I("s_endpgm")
    a.L("W_COMPUTE")
    a.I("s_and_b32 s18, s17, 1")
    a.I("s_lshr_b32 s19, s17, 1")
    a.I("v_and_b32 v13, 31, v0")
    a.I("v_lshrrev_b32 v14, 5, v0")
    a.I("v_bfe_u32 v15, v0, 1, 3")
    a.I("v_xor_b32 v15, v15, v14")
    a.I("v_lshlrev_b32 v15, 4, v15")
    a.I("v_lshl_add_u32 v15, v13, 7, v15")
    a.I("s_lshl_b32 s46, s18, 12")
    a.I("v_add_u32 v16, s46, v15")
    for t in range(1, 4): a.I(f"v_xor_b32 v{16+t}, {32*t}, v16")
    for t in range(4): a.I(f"v_add_u32 v{20+t}, 49152, v{16+t}")
    a.I("v_bfe_u32 v13, v0, 2, 2")
    a.I("v_lshl_add_u32 v15, v14, 3, v13")
    a.I("v_lshlrev_b32 v15, 7, v15")
    a.I("v_bfe_u32 v13, v0, 3, 1")
    a.I("v_xor_b32 v13, s19, v13")
    a.I("v_lshl_add_u32 v15, v13, 6, v15")
    a.I("v_and_b32 v13, 1, v12")
    a.I("v_lshl_add_u32 v15, v13, 5, v15")
    a.I("v_and_b32 v13, 3, v0")
    a.I("v_lshl_add_u32 v15, v13, 3, v15")
    a.I("v_add_u32 v24, 8192, v15")
    a.I(f"v_add_u32 v25, {8192+49152}, v15")
    G, U, FR = 96, 112, 32
    for i in range(G, G+32): a.I(f"v_mov_b32 v{i}, 0")
    a.I("s_lshl_b32 s46, s13, 2")
    a.I("s_lshl_b32 s47, s18, 1")
    a.I("s_add_u32 s46, s46, s47")
    a.I("s_mul_i32 s46, s46, 112")
    a.I("s_lshl_b32 s47, s12, 1")
    a.I("s_add_u32 s46, s46, s47")
    a.I("s_add_u32 s46, s46, s19")
    a.I("s_lshl_b32 s46, s46, 10")
    a.I("v_and_b32 v13, 1, v12")
    a.I(f"v_mul_u32_u24 v13, {112*1024}, v13")
    a.I("v_lshl_add_u32 v13, v14, 8, v13")
    a.I("v_and_b32 v15, 15, v0")
    a.I("v_lshl_add_u32 v13, v15, 4, v13")
    a.I("v_add_u32 v26, s46, v13")
    a.I("v_mov_b32 v27, 0")
    a.I("s_waitcnt lgkmcnt(0)")
    if o.stamps: a.I("s_mov_b32 s64, s58")
    def reads(slot, t):
        g, lo = slot // 2, (slot % 2) * 24576
        f = FR + 12*t
        a.I(f"ds_read_b128 v[{f}:{f+3}], v{16+4*g+t} offset:{lo}")
        a.I(f"ds_read_b64_tr_b16 v[{f+4}:{f+5}], v{24+g} offset:{lo+t*2048}")
        a.I(f"ds_read_b64_tr_b16 v[{f+6}:{f+7}], v{24+g} offset:{lo+t*2048+512}")
        a.I(f"ds_read_b64_tr_b16 v[{f+8}:{f+9}], v{24+g} offset:{lo+t*2048+8192}")
        a.I(f"ds_read_b64_tr_b16 v[{f+10}:{f+11}], v{24+g} offset:{lo+t*2048+8192+512}")
    def mfma(t):
        f = FR + 12*t
        a.I(f"v_mfma_f32_32x32x16_bf16 v[{G}:{G+15}], v[{f+4}:{f+7}], v[{f}:{f+3}], v[{G}:{G+15}]")
        a.I(f"v_mfma_f32_32x32x16_bf16 v[{U}:{U+15}], v[{f+8}:{f+11}], v[{f}:{f+3}], v[{U}:{U+15}]")
    for t in range(16):
        a.C(f"chunk step {t}")
        a.I("s_barrier")
        if t in (0, 4, 8, 12, 15): stamp({0:1, 4:2, 8:3, 12:4, 15:5}[t])
        if t == 8:
            a.I("global_load_dword v28, v27, s[44:45] sc1")
        reads(t % R, 0); reads(t % R, 1)
        if t > 0:
            mfma(2); mfma(3)
        reads(t % R, 2)
        a.I("s_waitcnt lgkmcnt(10)")
        mfma(0)
        reads(t % R, 3)
        a.I("s_waitcnt lgkmcnt(10)")
        mfma(1)
        a.I("s_waitcnt lgkmcnt(0)")
    mfma(2); mfma(3)
    a.I("s_mov_b32 s46, 0xbfb8aa3b")
    a.I("s_nop 7")
    a.I("s_nop 3")
    T = 32
    for i in range(16): a.I(f"v_mul_f32 v{T+i}, s46, v{G+i}")
    for i in range(16): a.I(f"v_exp_f32 v{T+i}, v{T+i}")
    for i in range(16): a.I(f"v_mul_f32 v{G+i}, v{G+i}, v{U+i}")
    for i in range(16): a.I(f"v_add_f32 v{T+i}, 1.0, v{T+i}")
    for i in range(16): a.I(f"v_rcp_f32 v{T+i}, v{T+i}")
    a.I("s_nop 0")
    for p in range(2):
        for i in range(8*p, 8*p+8): a.I(f"v_mul_f32 v{G+i}, v{G+i}, v{T+i}")
        for i in range(4): a.I(f"v_cvt_pk_bf16_f32 v{48+4*p+i}, v{G+8*p+2*i}, v{G+8*p+2*i+1}")
        a.I(f"buffer_store_dwordx4 v[{48+4*p}:{51+4*p}], v26, s[32:35], 0 offen offset:{512*p} sc1")
    stamp(6)
    a.I("s_waitcnt vmcnt(0)")
    a.I("s_barrier")
    stamp(7)
    a.I("s_cmp_lg_u32 s17, 0")
    a.I("s_cbranch_scc1 DONE")
    a.I("s_mov_b32 s50, 0")
    a.L("W_RST")
    a.I("v_readfirstlane_b32 s46, v28")
    a.I("s_add_u32 s50, s50, 1")
    a.I(f"s_cmp_gt_u32 s50, {SPIN_MAX}")
    a.I("s_cbranch_scc1 DONE")
    a.I("s_cmp_lg_u32 s46, 0")
    a.I("s_cbranch_scc1 W_FLAG")
    a.I("global_load_dword v28, v27, s[44:45] sc1")
    a.I("s_waitcnt vmcnt(0)")
    a.I("s_branch W_RST")
    a.L("W_FLAG")
    a.I("s_mul_i32 s46, s14, 14")
    a.I("s_add_u32 s46, s46, s15")
    a.I("s_lshl_b32 s46, s46, 7")
    a.I(f"s_add_u32 s46, s46, {FLAG_OFF}")
    a.I("v_mov_b32 v28, 1")
    a.I("s_mov_b64 exec, 1")
    a.I("buffer_store_dword v28, v27, s[32:35], s46 offen sc1")
    a.I("s_mov_b64 exec, -1")
    stamp_flush("W")
    a.I("s_endpgm")
    a.L("NOT_WORKER")
    a.I("s_cmp_ge_u32 s15, 30")
    a.I("s_cbranch_scc1 HELPER")
    a.I("s_sub_u32 s15, s15, 14")
    a.I("s_and_b32 s18, s15, 1")
    a.I("s_lshl_b32 s12, s14, 1")
    a.I("s_add_u32 s12, s12, s18")
    a.I("s_lshr_b32 s13, s15, 1")
    a.I("s_mul_i32 s19, s13, 7")
    a.I("s_lshr_b32 s19, s19, 2")
    a.I("s_mul_i32 s18, s18, 7")
    a.I("s_add_u32 s19, s19, s18")
    a.I("s_sub_u32 s46, s19, 14")
    a.I("s_cmp_ge_u32 s19, 14")
    a.I("s_cselect_b32 s19, s46, s19")
    a.I(f"s_mov_b32 s38, {WB}")
    a.I("s_mov_b32 s39, 0x20000")
    a.I(f"s_mul_i32 s46, s17, {448*2048}")
    a.I("s_lshl_b32 s47, s12, 7")
    a.I("s_add_u32 s46, s46, s47")
    a.I("v_lshlrev_b32 v13, 1, v12")
    a.I("v_xor_b32 v13, v13, v11")
    a.I("v_lshlrev_b32 v13, 4, v13")
    a.I("v_lshlrev_b32 v14, 11, v10")
    a.I("v_add3_u32 v2, v13, v14, s46")
    for i in range(1, 4): a.I(f"v_add_u32 v{2+i}, {i*(8*2048-1024)}, v2")
    a.I("s_mul_i32 s46, s17, 20480")
    a.I("s_mov_b32 s51, s19")
    a.I("s_waitcnt lgkmcnt(0)")
    if o.stamps: a.I("s_mov_b32 s64, s58")
    NR, NL = 9, 5
    def dma2(s):
        a.I(f"s_add_u32 m0, s46, {(s % NL)*4096}")
        a.I("s_lshl_b32 s48, s51, 16")
        for i in range(4):
            a.I(f"buffer_load_dwordx4 v{2+i}, s[36:39], s48 offen offset:{1024*i} lds")
        a.I("s_add_u32 s51, s51, 1")
        a.I("s_cmp_eq_u32 s51, 14")
        a.I("s_cselect_b32 s51, 0, s51")
    dma2(0); dma2(1)
    a.I("s_barrier")
    for s in range(2, NL): dma2(s)
    a.I("v_bfe_u32 v13, v0, 2, 3")
    a.I("v_lshrrev_b32 v14, 5, v0")
    a.I("v_lshl_add_u32 v14, v14, 4, v13")
    a.I("v_lshlrev_b32 v14, 7, v14")
    a.I("v_lshrrev_b32 v13, 1, v13")
    a.I("v_lshl_add_u32 v14, v13, 5, v14")
    a.I("v_and_b32 v13, 3, v0")
    a.I("v_lshl_add_u32 v14, v13, 3, v14")
    a.I("v_add_u32 v6, s46, v14")
    for t in range(1, 4): a.I(f"v_xor_b32 v{6+t}, {32*t}, v6")
    ACC, WT, HF, WR = 16, 32, 56, 112
    for i in range(ACC, ACC+16): a.I(f"v_mov_b32 v{i}, 0")
    def rd2(slot, dst):
        for t in range(4):
            a.I(f"ds_read_b64_tr_b16 v[{dst+4*t}:{dst+4*t+1}], v{6+t} offset:{slot*4096}")
            a.I(f"ds_read_b64_tr_b16 v[{dst+4*t+2}:{dst+4*t+3}], v{6+t} offset:{slot*4096+1024}")
    a.I("s_lshr_b32 s47, s13, 2")
    a.I("s_mul_i32 s52, s17, 14")
    a.I("s_add_u32 s47, s47, s52")
    a.I("s_lshl_b32 s47, s47, 7")
    a.I(f"s_add_u32 s53, s47, {FLAG_OFF}")
    a.I("v_min_u32 v12, 6, v0")
    a.I("v_lshlrev_b32 v12, 8, v12")
    a.I("s_mul_i32 s47, s13, 112")
    a.I("s_add_u32 s47, s47, s52")
    a.I("s_lshl_b32 s47, s47, 10")
    a.I("v_lshlrev_b32 v11, 4, v0")
    a.I("v_add_u32 v10, s47, v11")
    a.I("v_mov_b32 v15, 0")
    for s in range(NR):
        a.I(f"s_waitcnt vmcnt({4*(NL-1)})")
        if s in (0, 4): stamp({0:1, 4:2}[s])
        rd2(s % NL, WR + 16*s)
        a.I("s_waitcnt lgkmcnt(0)")
        dma2(s + NL)
    a.I("global_load_dword v14, v15, s[44:45] sc1")
    a.I("s_waitcnt vmcnt(0)")
    stamp(3)
    a.I("s_mov_b32 s50, 0")
    a.L("P_RST")
    a.I("v_readfirstlane_b32 s47, v14")
    a.I("s_add_u32 s50, s50, 1")
    a.I(f"s_cmp_gt_u32 s50, {SPIN_MAX}")
    a.I("s_cbranch_scc1 DONE")
    a.I("s_cmp_lg_u32 s47, 0")
    a.I("s_cbranch_scc1 P_POLL")
    a.I("global_load_dword v14, v15, s[44:45] sc1")
    a.I("s_waitcnt vmcnt(0)")
    a.I("s_branch P_RST")
    a.L("P_POLL")
    a.I("buffer_load_dword v14, v12, s[32:35], s53 offen sc1")
    a.I("s_add_u32 s50, s50, 1")
    a.I(f"s_cmp_gt_u32 s50, {SPIN_MAX}")
    a.I("s_cbranch_scc1 DONE")
    a.I("s_waitcnt vmcnt(0)")
    a.I("v_cmp_ne_u32 vcc, 1, v14")
    a.I("s_nop 1")
    a.I("s_cbranch_vccnz P_POLL")
    stamp(4)
    a.I("s_mov_b32 s51, s19")
    for s in range(14):
        a.I("s_lshl_b32 s48, s51, 10")
        a.I(f"buffer_load_dwordx4 v[{HF+4*s}:{HF+4*s+3}], v10, s[32:35], s48 offen sc1")
        if s < 13:
            a.I("s_add_u32 s51, s51, 1")
            a.I("s_cmp_eq_u32 s51, 14")
            a.I("s_cselect_b32 s51, 0, s51")
    def mm(src, s):
        for t in range(4):
            a.I(f"v_mfma_f32_16x16x32_bf16 v[{ACC+4*t}:{ACC+4*t+3}], v[{src+4*t}:{src+4*t+3}], v[{HF+4*s}:{HF+4*s+3}], v[{ACC+4*t}:{ACC+4*t+3}]")
    for s in range(14):
        if s < NR:
            a.I(f"s_waitcnt vmcnt({13-s}) lgkmcnt(7)")
            mm(WR + 16*s, s)
            if s < NL:
                rd2((NR + s) % NL, WR + 16*s)
        else:
            a.I(f"s_waitcnt vmcnt({13-s}) lgkmcnt(0)")
            mm(WR + 16*(s - NR), s)
    stamp(5)
    a.I("v_add_u32 v13, s46, v11")
    a.I("s_nop 6")
    for t in range(4):
        a.I(f"ds_write_b128 v13, v[{ACC+4*t}:{ACC+4*t+3}] offset:{1024*t}")
    a.I("s_waitcnt lgkmcnt(0)")
    a.I("s_barrier")
    a.I("s_cmp_ge_u32 s17, 4")
    a.I("s_cbranch_scc1 DONE")
    a.I("s_lshl_b32 s47, s17, 10")
    a.I("v_add_u32 v13, s47, v11")
    a.I("v_add_u32 v14, 61440, v13")
    a.I("v_add_u32 v15, 122880, v13")
    for w in range(8):
        b, off = (13, 14, 15)[w // 3], (w % 3) * 20480
        a.I(f"ds_read_b128 v[{32+4*w}:{35+4*w}], v{b} offset:{off}")
    a.I(f"s_mov_b32 s42, {XB}")
    a.I("s_mov_b32 s43, 0x20000")
    a.I("s_lshl_b32 s47, s13, 15")
    a.I("s_lshl_b32 s48, s12, 7")
    a.I("s_add_u32 s47, s47, s48")
    a.I("s_lshl_b32 s48, s17, 5")
    a.I("s_add_u32 s47, s47, s48")
    a.I("v_and_b32 v13, 15, v0")
    a.I("v_lshlrev_b32 v13, 11, v13")
    a.I("v_lshrrev_b32 v14, 4, v0")
    a.I("v_lshl_add_u32 v13, v14, 3, v13")
    for k in range(4):
        a.I(f"s_waitcnt lgkmcnt({6-2*k})")
        for i in range(4): a.I(f"v_add_f32 v{32+8*k+i}, v{32+8*k+i}, v{36+8*k+i}")
    for i in range(4): a.I(f"v_add_f32 v{32+i}, v{32+i}, v{40+i}")
    for i in range(4): a.I(f"v_add_f32 v{48+i}, v{48+i}, v{56+i}")
    for i in range(4): a.I(f"v_add_f32 v{32+i}, v{32+i}, v{48+i}")
    a.I("v_cvt_pk_bf16_f32 v36, v32, v33")
    a.I("v_cvt_pk_bf16_f32 v37, v34, v35")
    a.I("buffer_store_dwordx2 v[36:37], v13, s[40:43], s47 offen")
    if o.stamps:
        stamp(6)
        a.I("s_cmp_lg_u32 s17, 0")
        a.I("s_cbranch_scc1 DONE")
        stamp_flush("P")
    a.I("s_endpgm")
    a.L("HELPER")
    a.I("s_cmp_lg_u32 s17, 0")
    a.I("s_cbranch_scc1 H_OTHER")
    a.I("s_sub_u32 s46, s15, 30")
    a.I("s_lshl_b32 s46, s46, 17")
    a.I("v_lshlrev_b32 v2, 11, v0")
    a.I("s_waitcnt lgkmcnt(0)")
    if o.stamps: a.I("s_mov_b32 s64, s58")
    for c in range(16):
        a.I(f"buffer_load_dword v{16+c}, v2, s[20:23], s46 offen offset:{128*c}")
    stamp_flush("H")
    a.I("s_endpgm")
    a.L("H_OTHER")
    a.I("s_cmp_lg_u32 s2, 240")
    a.I("s_cbranch_scc1 DONE")
    a.I("s_cmp_lg_u32 s17, 1")
    a.I("s_cbranch_scc1 DONE")
    a.I("v_lshlrev_b32 v2, 7, v0")
    a.I("v_mov_b32 v3, 0")
    a.I("v_mov_b32 v4, 1")
    a.I(f"s_mov_b32 s46, {FLAG_OFF}")
    a.I(f"s_mov_b32 s47, {FLAG_OFF + 8192}")
    a.I("s_waitcnt lgkmcnt(0)")
    a.I("buffer_store_dword v3, v2, s[32:35], s46 offen sc1")
    a.I("buffer_store_dword v3, v2, s[32:35], s47 offen sc1")
    a.I("s_waitcnt vmcnt(0)")
    a.I("s_mov_b64 exec, 1")
    a.I("global_store_dword v3, v4, s[44:45] sc1")
    a.L("DONE")
    a.I("s_endpgm")
    a.L("CODE_END")
    a('.section .rodata,"a"')
    a(".p2align 6")
    a(descriptor(name, 256, 96, 256))
    hdr = HEADER_COMMENT + f"; @launch grid=(256,1,1) block=(512,1,1) lds=163840\n"
    open(out, "w").write(hdr + a.text())

if __name__ == "__main__":
    o = Opt()
    gen("s1.s", o)
    o.stamps = True
    gen("s1_st.s", o)
```

```python
import sys
from asmlib import *
XB = 128*1024*2
WB = 1024*3584*2

def code_prefetch(a, endlabel, startlabel):
    a.I("s_getpc_b64 s[30:31]")
    a.L("PCREF")
    a.I("v_lshlrev_b32 v4, 7, v0")
    a.I(f"v_min_u32 v4, ({endlabel}-PCREF-4), v4")
    a.I("v_mov_b32 v5, s31")
    a.I("v_add_co_u32 v4, vcc, s30, v4")
    a.I("s_nop 1")
    a.I("v_addc_co_u32 v5, vcc, 0, v5, vcc")
    a.I("global_load_dword v7, v[4:5], off")

def srd(a, d, base, nbytes):
    a.I(f"s_mov_b32 s{d}, s{base}")
    a.I(f"s_and_b32 s{d+1}, s{base+1}, 0xffff")
    a.I(f"s_mov_b32 s{d+2}, {nbytes}")
    a.I(f"s_mov_b32 s{d+3}, 0x20000")

def gen(out, *, mrows=32, rot="none", win=6, xfirst=False, helpers=None, flags="", nt_own=False, hmode="mix", wdelay=0, fine=False, hfl="", hwin=0):
    a = Asm()
    a('.amdgcn_target "amdgcn-amd-amdhsa--gfx950"')
    a(".text")
    name = "standalone__swiglu_ffn__sampling_kernel"
    kernel_begin(a, name)
    nsh = 128 // mrows
    nwork = 7*nsh
    nh = 32 - nwork
    nwg = 256 if helpers is not None else 8*nwork
    a.I(f"s_cmp_ge_u32 s2, {nwg}")
    a.I("s_cbranch_scc1 DONE")
    a.I("s_memrealtime s[60:61]")
    a.I("s_memtime s[62:63]")
    a.I("s_load_dwordx4 s[4:7], s[0:1], 0")
    a.I("s_load_dwordx2 s[8:9], s[0:1], 16")
    a.I("s_load_dwordx2 s[10:11], s[0:1], 48")
    code_prefetch(a, "CODE_END", name)
    a.I("v_lshrrev_b32 v1, 6, v0")
    a.I("v_and_b32 v0, 63, v0")
    a.I("v_readfirstlane_b32 s17, v1")
    a.I("s_and_b32 s14, s2, 7")
    a.I("s_lshr_b32 s15, s2, 3")
    a.I("s_mul_i32 s46, s17, 40960")
    a.I("v_lshrrev_b32 v10, 3, v0")
    a.I("v_and_b32 v11, 7, v0")
    a.I("v_lshlrev_b32 v11, 4, v11")
    a.I("s_waitcnt lgkmcnt(0)")
    a.I("s_mov_b32 s64, s60")
    a.I("s_mov_b32 s68, s62")
    srd(a, 20, 4, XB); srd(a, 24, 6, WB); srd(a, 28, 8, WB)
    def stamp(i):
        a.I("s_memrealtime s[50:51]")
        a.I("s_waitcnt lgkmcnt(0)")
        a.I(f"s_mov_b32 s{64+i}, s50")
    cnt = [0]
    def dma(v, s, soff, off=0, fl=""):
        a.I(f"s_add_u32 m0, s46, {(cnt[0] % 36)*1024}")
        a.I("s_nop 0")
        o = f" offset:{off}" if off else ""
        a.I(f"buffer_load_dwordx4 v{v}, s[{s}:{s+3}], {soff} offen{o} {fl} lds")
        cnt[0] += 1
    if helpers is not None:
        a.I(f"s_cmp_ge_u32 s15, {nwork}")
        a.I("s_cbranch_scc1 HELPER")
    sh = nsh.bit_length()-1
    a.I(f"s_lshr_b32 s12, s15, {sh}")
    a.I("s_mul_i32 s13, s14, 7")
    a.I("s_add_u32 s12, s12, s13")
    a.I(f"s_and_b32 s13, s15, {nsh-1}")
    a.I("s_mul_i32 s44, s17, %d" % (16*7168))
    a.I("s_lshl_b32 s45, s12, 7")
    a.I("s_add_u32 s44, s44, s45")
    a.I("v_mul_u32_u24 v12, 7168, v10")
    a.I("v_add3_u32 v2, v12, v11, s44")
    a.I(f"v_add_u32 v3, {8*7168}, v2")
    a.I(f"s_mul_i32 s44, s13, {mrows*2048}")
    a.I("s_lshl_b32 s45, s17, 14")
    a.I("s_add_u32 s44, s44, s45")
    a.I("v_lshlrev_b32 v12, 11, v10")
    a.I("v_add3_u32 v8, v12, v11, s44")
    a.I(f"v_add_u32 v9, {32*2048}, v8")
    if wdelay:
        a.L("WD")
        a.I("s_memrealtime s[50:51]")
        a.I("s_waitcnt lgkmcnt(0)")
        a.I("s_sub_u32 s50, s50, s64")
        a.I(f"s_cmp_lt_u32 s50, {wdelay}")
        a.I("s_cbranch_scc1 WD")
    nx = mrows // 32
    per = 4 + (0 if xfirst else nx)
    if xfirst:
        for c in range(16):
            a.I(f"s_mov_b32 s49, {c*128}")
            for i in range(nx):
                dma(8+i, 20, "s49")
    for t in range(16):
        if rot == "none":
            a.I(f"s_mov_b32 s47, {t}")
        elif rot == "coarse":
            a.I(f"s_lshl_b32 s47, s13, {4 - sh}")
            a.I(f"s_add_u32 s47, s47, {t}")
            a.I("s_and_b32 s47, s47, 15")
        elif rot.startswith("fine"):
            u = int(rot[4:] or 1)
            G = nsh*u
            a.I(f"s_mul_i32 s47, s13, {u}")
            a.I(f"s_add_u32 s47, s47, {t % G}")
            a.I(f"s_and_b32 s47, s47, {G-1}")
            a.I(f"s_add_u32 s47, s47, {t - t % G}")
        a.I(f"s_mul_i32 s48, s47, {64*7168}")
        a.I(f"s_lshl_b32 s49, s47, 7")
        dma(2, 24, "s48", fl=flags); dma(3, 24, "s48", fl=flags); dma(2, 28, "s48", fl=flags); dma(3, 28, "s48", fl=flags)
        if not xfirst:
            for i in range(nx):
                dma(8+i, 20, "s49")
        if t >= win - 1:
            a.I(f"s_waitcnt vmcnt({per*(win-1)})")
            if t == win - 1: stamp(1)
            if fine: stamp(6 + t - (win-1))
        if t == 8: stamp(2)
    if fine:
        for t in range(16-(win-1), 16):
            a.I(f"s_waitcnt vmcnt({per*(15-t)})")
            stamp(6+t)
    a.I("s_branch FIN")
    if helpers is not None:
        a.L("HELPER")
        a.I(f"s_sub_u32 s13, s15, {nwork}")
        if hmode == "mix":
            a.I("v_and_b32 v12, 7, v0")
            a.I("v_min_u32 v12, 6, v12")
            a.I("v_lshlrev_b32 v12, 7, v12")
            a.I("v_mul_u32_u24 v13, 7168, v10")
            a.I("s_mul_i32 s44, s14, 896")
            a.I("s_lshr_b32 s45, s13, 1")
            a.I(f"s_mul_i32 s45, s45, {8*7168}")
            a.I("s_add_u32 s44, s44, s45")
            a.I("v_add3_u32 v2, v12, v13, s44")
            XP = 16
        else:
            a.I("s_lshr_b32 s45, s13, 1")
            a.I("s_mul_i32 s44, s14, 7")
            a.I("s_sub_u32 s43, 3, s44")
            a.I("s_and_b32 s43, s43, 7")
            a.I("s_cmp_ge_u32 s13, 16")
            a.I("s_cselect_b32 s45, s43, s45")
            a.I("s_add_u32 s44, s44, s45")
            a.I("s_lshl_b32 s44, s44, 7")
            a.I("v_mul_u32_u24 v13, 7168, v0")
            a.I("v_add_u32 v2, s44, v13")
            XP = 14
        a.I("s_bitcmp1_b32 s13, 0")
        a.I("s_cselect_b32 s32, s28, s24")
        a.I("s_cselect_b32 s33, s29, s25")
        a.I(f"s_mov_b32 s34, {WB}")
        a.I("s_mov_b32 s35, 0x20000")
        a.I(f"s_mov_b32 s36, {64*7168}")
        a.I(f"s_sub_u32 s37, s13, {XP}")
        a.I("s_cmp_lt_u32 s37, 2")
        a.I("s_cbranch_scc0 HNX")
        a.I("s_mov_b32 s32, s20")
        a.I("s_mov_b32 s33, s21")
        a.I(f"s_mov_b32 s34, {XB}")
        a.I("s_mov_b32 s36, 128")
        a.I("s_lshl_b32 s37, s37, 17")
        a.I("v_lshlrev_b32 v2, 11, v0")
        a.I("v_add_u32 v2, s37, v2")
        a.L("HNX")
        if hmode == "mix":
            a.I("s_cmp_lg_u32 s17, 0")
            a.I("s_cbranch_scc1 HEND")
            a.I("s_mov_b32 s48, 0")
            for i in range(16):
                a.I(f"buffer_load_dword v{16+i}, v2, s[32:35], s48 offen {hfl}")
                a.I("s_add_u32 s48, s48, s36")
                if hwin and i >= hwin-1: a.I(f"s_waitcnt vmcnt({hwin-1})")
            a.L("HEND")
        else:
            a.I("s_cmp_ge_u32 s13, 16")
            a.I("s_cselect_b32 s38, 1, 0")
            a.I("s_cmp_eq_u32 s45, s43")
            a.I("s_cselect_b32 s39, 1, 0")
            a.I("s_sub_u32 s37, s13, 14")
            a.I("s_cmp_lt_u32 s37, 2")
            a.I("s_cselect_b32 s39, 0, s39")
            a.I("s_cmp_eq_u32 s45, 7")
            a.I("s_cselect_b32 s40, s38, 0")
            a.I("s_cmp_eq_u32 s40, 1")
            a.I("s_cbranch_scc1 HEND")
            for i in range(4):
                a.I(f"s_add_u32 s48, s17, {4*i}")
                a.I("s_lshl_b32 s48, s48, s39")
                a.I("s_add_u32 s48, s48, s38")
                a.I("s_cmp_ge_u32 s48, 16")
                a.I("s_cbranch_scc1 HEND")
                a.I("s_mul_i32 s48, s48, s36")
                a.I(f"buffer_load_dword v{16+i}, v2, s[32:35], s48 offen {hfl}")
            a.L("HEND")
        if fine:
            a.L("HEND2") if False else None
            for i in range(16): a.I(f"s_mov_b32 s{70+i}, 0")
        stamp(1); stamp(2)
    a.L("FIN")
    a.I("s_waitcnt vmcnt(0)")
    a.I("s_barrier")
    stamp(3)
    a.I("s_memtime s[62:63]")
    a.I("s_waitcnt lgkmcnt(0)")
    a.I("s_sub_u32 s69, s62, s68")
    a.I("s_add_u32 s68, s64, 1")
    a.I("s_add_u32 s69, s69, s64")
    a.I("s_cmp_lg_u32 s17, 0")
    a.I("s_cbranch_scc1 DONE")
    a.I("s_mov_b32 s52, s10")
    a.I("s_and_b32 s53, s11, 0xffff")
    a.I("s_mov_b32 s54, 0x10000000")
    a.I("s_mov_b32 s55, 0x20000")
    NS = 22 if fine else 6
    a.I(f"s_mul_i32 s56, s2, {4*NS}")
    a.I(f"s_add_u32 s56, s56, {64<<20}")
    a.I("v_mov_b32 v1, 0")
    for i in range(NS):
        a.I(f"v_mov_b32 v2, s{64+i}")
        a.I(f"buffer_store_dword v2, v1, s[52:55], s56 offen offset:{4*i}")
    a.L("DONE")
    a.I("s_endpgm")
    a.L("CODE_END")
    a('.section .rodata,"a"')
    a(".p2align 6")
    a(descriptor(name, 40, 96, 40))
    hdr = HEADER_COMMENT + f"; @launch grid=({nwg},1,1) block=(256,1,1) lds=163840\n"
    open(out, "w").write(hdr + a.text())

if __name__ == "__main__":
    E = "exp/"
    gen(E+"mp_f_mix.s", mrows=64, rot="none", win=3, helpers=[0], hmode="mix", fine=True)
    gen(E+"mp_f_mixw3.s", mrows=64, rot="none", win=3, helpers=[0], hmode="mix", fine=True, hwin=3)
    gen(E+"mp_f_mixw2.s", mrows=64, rot="none", win=3, helpers=[0], hmode="mix", fine=True, hwin=2)
    gen(E+"mp_g_mix.s", mrows=64, rot="none", win=3, helpers=[0], hmode="mix")
    gen(E+"mp_g_mixw3.s", mrows=64, rot="none", win=3, helpers=[0], hmode="mix", hwin=3)
```

```python
import sys
from asmlib import *
from mb_p1 import code_prefetch, srd
def gen(out, *, stfl="sc1", ldfl="sc1", sleep=0, prewait=150, depth=1, atomic=False, pollers=1, pre_store=False, smem=None, samedie=False, preload=False):
    a = Asm()
    a('.amdgcn_target "amdgcn-amd-amdhsa--gfx950"')
    a(".text")
    name = "standalone__swiglu_ffn__sampling_kernel"
    kernel_begin(a, name)
    a.I(f"s_cmp_ge_u32 s2, 256")
    a.I("s_cbranch_scc1 DONE")
    a.I("s_memrealtime s[60:61]")
    a.I("s_load_dwordx4 s[8:11], s[0:1], 40")
    code_prefetch(a, "CODE_END", name)
    a.I("v_lshrrev_b32 v1, 6, v0")
    a.I("v_and_b32 v0, 63, v0")
    a.I("v_readfirstlane_b32 s17, v1")
    if samedie:
        a.I("s_bfe_u32 s14, s2, 0x30003")
        a.I("s_lshr_b32 s15, s2, 6")
        a.I("s_lshl_b32 s15, s15, 3")
        a.I("s_and_b32 s16, s2, 7")
        a.I("s_or_b32 s15, s15, s16")
    else:
        a.I("s_and_b32 s14, s2, 7")
        a.I("s_lshr_b32 s15, s2, 3")
    a.I("s_waitcnt lgkmcnt(0)")
    a.I("s_mov_b32 s64, s60")
    srd(a, 20, 10, 1 << 28)
    def stamp(i):
        a.I("s_memrealtime s[50:51]")
        a.I("s_waitcnt lgkmcnt(0)")
        a.I(f"s_mov_b32 s{64+i}, s50")
    a.I("s_add_u32 s45, s64, 400")
    a.I("s_or_b32 s45, s45, 2047")
    a.I("s_add_u32 s45, s45, 1")
    a.I("v_min_u32 v2, 7, v0")
    a.I("s_lshl_b32 s46, s15, 6")
    a.I("v_lshlrev_b32 v3, 3, v2")
    a.I("v_add3_u32 v3, v3, s46, s14") if False else None
    a.I("s_add_u32 s47, s46, s14")
    a.I("v_add_u32 v3, s47, v3")
    a.I("v_lshlrev_b32 v3, 7, v3")
    a.I("s_lshl_b32 s47, s14, 3")
    a.I("s_add_u32 s47, s47, s46")
    a.I("v_add_u32 v4, s47, v2")
    a.I("v_lshlrev_b32 v4, 7, v4")
    a.I("v_mov_b32 v5, s45")
    a.I(f"s_mov_b32 s48, {32<<20}")
    a.I("s_cmp_eq_u32 s17, 0")
    a.I("s_cbranch_scc0 POLLER")
    if pre_store:
        a.I("v_mov_b32 v6, 0")
        a.I("s_mov_b64 exec, 255")
        a.I(f"buffer_store_dword v6, v3, s[20:23], s48 offen sc1")
        a.I("s_mov_b64 exec, -1")
        a.I("s_waitcnt vmcnt(0)")
    a.L("WAITT")
    a.I("s_memrealtime s[50:51]")
    a.I("s_waitcnt lgkmcnt(0)")
    a.I("s_sub_u32 s46, s45, s50")
    a.I("s_cmp_gt_i32 s46, 0")
    a.I("s_cbranch_scc1 WAITT")
    a.I("s_mov_b64 exec, 255")
    if atomic:
        a.I(f"buffer_atomic_swap v5, v3, s[20:23], s48 offen sc1")
    else:
        a.I(f"buffer_store_dword v5, v3, s[20:23], s48 offen {stfl}")
    a.I("s_mov_b64 exec, -1")
    a.I("s_waitcnt vmcnt(0)")
    stamp(2)
    a.I(f"s_mul_i32 s56, s2, 24")
    a.I(f"s_add_u32 s56, s56, {64<<20}")
    a.I("v_mov_b32 v1, 0")
    a.I("v_mov_b32 v2, s66")
    a.I(f"buffer_store_dword v2, v1, s[20:23], s56 offen offset:8")
    a.I("s_endpgm")
    a.L("POLLER")
    a.I(f"s_cmp_gt_u32 s17, {pollers}")
    a.I("s_cbranch_scc1 DONE")
    if preload:
        a.I("buffer_load_dword v9, v4, s[20:23], s48 offen")
        a.I("s_waitcnt vmcnt(0)")
    a.L("WAITP")
    a.I("s_memrealtime s[50:51]")
    a.I("s_waitcnt lgkmcnt(0)")
    a.I("s_sub_u32 s46, s45, s50")
    a.I(f"s_cmp_gt_i32 s46, {prewait}")
    a.I("s_cbranch_scc1 WAITP")
    a.I("s_mov_b32 s42, 0")
    if smem is not None:
        a.I("s_lshl_b32 s47, s14, 3")
        a.I("s_lshl_b32 s46, s15, 6")
        a.I("s_add_u32 s47, s47, s46")
        a.I("s_lshl_b32 s47, s47, 7")
        a.I(f"s_add_u32 s47, s47, {32<<20}")
        a.I("s_add_u32 s26, s10, s47")
        a.I("s_addc_u32 s27, s11, 0")
        a.L("SP")
        for i in range(8):
            a.I(f"s_load_dword s{28+i}, s[26:27], {128*i} {smem}")
        a.I("s_add_u32 s42, s42, 1")
        a.I("s_cmp_gt_u32 s42, 100000")
        a.I("s_cbranch_scc1 GOT")
        a.I("s_waitcnt lgkmcnt(0)")
        a.I("s_mov_b32 s36, 0")
        for i in range(8):
            a.I(f"s_xor_b32 s{28+i}, s{28+i}, s45")
            a.I(f"s_or_b32 s36, s36, s{28+i}")
        a.I("s_cbranch_scc1 SP")
        a.I("s_branch GOT")
    for d in range(depth-1):
        a.I(f"buffer_load_dword v{10+d}, v4, s[20:23], s48 offen {ldfl}")
        a.I("s_sleep 2")
    a.L("POLL")
    for d in range(depth):
        a.I(f"buffer_load_dword v{10+(d+depth-1)%depth}, v4, s[20:23], s48 offen {ldfl}")
        a.I(f"s_waitcnt vmcnt({depth-1})")
        a.I(f"v_cmp_ne_u32 vcc, v5, v{10+d}")
        a.I("s_add_u32 s42, s42, 1")
        a.I("s_cbranch_vccz GOT")
        if sleep: a.I(f"s_sleep {sleep}")
    a.I("s_cmp_lt_u32 s42, 100000")
    a.I("s_cbranch_scc1 POLL")
    a.L("GOT")
    stamp(3)
    a.I("s_cmp_lg_u32 s17, 1")
    a.I("s_cbranch_scc1 DONE")
    a.I("s_mul_i32 s42, s42, 100")
    a.I("s_add_u32 s68, s64, s42")
    a.I("s_mov_b32 s65, s45")
    a.I(f"s_mul_i32 s56, s2, 24")
    a.I(f"s_add_u32 s56, s56, {64<<20}")
    a.I("v_mov_b32 v1, 0")
    for i in (0, 1, 3, 4):
        a.I(f"v_mov_b32 v2, s{64+i}")
        a.I(f"buffer_store_dword v2, v1, s[20:23], s56 offen offset:{4*i}")
    a.I(f"buffer_store_dword v1, v1, s[20:23], s56 offen offset:20")
    a.L("DONE")
    a.I("s_endpgm")
    a.L("CODE_END")
    a('.section .rodata,"a"')
    a(".p2align 6")
    a(descriptor(name, 64, 96, 64))
    hdr = HEADER_COMMENT + f"; @launch grid=(256,1,1) block=(256,1,1) lds=163840\n"
    open(out, "w").write(hdr + a.text())
if __name__ == "__main__":
    E = "exp/"
    gen(E+"mg_a.s", samedie=True, stfl="")
    gen(E+"mg_b.s", samedie=True, stfl="", smem="glc", preload=True)
    gen(E+"mg_c.s", samedie=True, stfl="", smem="glc")
    gen(E+"mg_d.s", samedie=True, stfl="sc1", smem="glc")
    gen(E+"mg_e.s", samedie=True, stfl="", smem="glc", preload=True, pollers=3)
```

```python
import sys
from asmlib import *

XB = 128*1024*2
WB = 1024*3584*2
H_OFF = 65536
FLAG_OFF = 1 << 20
FLAGL = 1 << 16
FLAG2_OFF = (1 << 20) + (1 << 18)
PART_OFF = 2 << 20
WS_BYTES = 6 << 20
SPIN_MAX = 200000
CH = 64*7168
LE = 98304
LH = 49152

class Opt:
    stamps = False
    light = False
    name = "standalone__swiglu_ffn__sampling_kernel"
    NST = 16
    sleep = 4
    sleep2 = 2
    xpre = None
    stw = 0
    ramp = 0
    outfl = ""
    prio = 1
    hint = 0
    hint2 = 0
    al = ''
    alphase = 0
    tlb = ''
    g4 = True
    t1after = False
    c1b = None
    pk = True
    ilv = False
    hold = 0
    early = (0, 0)
    onebar = None
    cuts = (9, 11)
    twinonly = True
    pollfirst = True
    pubat = 'end'
    xw = 0
    prew = False
    spoll = 1
    rampw = ()
    tlbw = 1
    setupearly = True
    thr = 8
    ftouch = 4
    exp_half = False
    c1 = 3
    c2 = 10
    gw = 0
    amp = None
    ampat = None
    ampskew = 0
    ampdie = None
    delay = 0
    xfirst = False
    wsplit = 11

def gen(out, o):
    a = Asm()
    I, L = a.I, a.L
    a('.amdgcn_target "amdgcn-amd-amdhsa--gfx950"')
    a(".text")
    name = o.name
    a(".p2align 12")
    a(f".fill {(4096-768)//4}, 4, 0xbf810000")
    kernel_begin(a, name)
    full = o.stamps and not o.light
    def stamp(i):
        if o.ampat == i:
            I("s_memrealtime s[62:63]")
            I("s_waitcnt lgkmcnt(0)")
        if not o.stamps or (o.light and i != o.NST-1): return
        I("s_memrealtime s[58:59]")
        I("s_waitcnt lgkmcnt(0)")
        I(f"s_mov_b32 s{64+i}, s58")
    def stamp0():
        if o.stamps:
            I("s_mov_b32 s64, s56")
            for i in range(1, o.NST): I(f"s_mov_b32 s{64+i}, 0")
    def stamp_flush():
        if not o.stamps: return
        I("s_waitcnt vmcnt(0)")
        stamp(o.NST-1)
        if o.light: I("v_readfirstlane_b32 s65, v84")
        I("s_mov_b32 s62, 0x10000000")
        I("s_mov_b32 s60, s32")
        I("s_mov_b32 s61, s33")
        I("s_mov_b32 s63, 0x20000")
        I(f"s_mul_i32 s56, s2, {o.NST*4}")
        I(f"s_add_u32 s56, s56, {64<<20}")
        I("v_mov_b32 v1, 0")
        for i in range(o.NST):
            I(f"v_mov_b32 v2, s{64+i}")
            I(f"buffer_store_dword v2, v1, s[60:63], s56 offen offset:{4*i}")
    def spin(lab):
        I("s_add_u32 s8, s8, 1")
        I(f"s_cmp_gt_u32 s8, {SPIN_MAX}")
        I(f"s_cbranch_scc1 {lab}")
    I("s_memrealtime s[56:57]")
    I("s_load_dwordx2 s[24:25], s[0:1], 8")
    I("s_load_dwordx2 s[28:29], s[0:1], 16")
    I("s_load_dwordx2 s[20:21], s[0:1], 0")
    I("s_load_dwordx2 s[36:37], s[0:1], 24")
    I("s_load_dwordx2 s[40:41], s[0:1], 32")
    I("s_load_dwordx2 s[44:45], s[0:1], 40")
    I("s_load_dwordx2 s[32:33], s[0:1], 48")
    I("s_lshr_b32 s15, s2, 3")
    I("s_cmp_ge_u32 s15, 32")
    I("s_cbranch_scc1 DONE")
    I("s_getpc_b64 s[4:5]")
    L("PCREF")
    I("v_lshlrev_b32 v2, 7, v0")
    I("v_min_u32 v2, (CODE_END-PCREF-4), v2")
    I("v_lshrrev_b32 v1, 6, v0")
    I("global_load_dword v255, v2, s[4:5]")
    I("v_readfirstlane_b32 s17, v1")
    I("v_and_b32 v0, 63, v0")
    I("s_and_b32 s14, s2, 7")
    I("s_mov_b32 s23, 0x20000")
    I(f"s_mov_b32 s22, {XB}")
    I(f"s_mov_b32 s26, {WB}")
    I("s_mov_b32 s27, 0x20000")
    I("s_mov_b32 s30, s26")
    I("s_mov_b32 s31, 0x20000")
    I("v_lshrrev_b32 v10, 3, v0")
    I("v_and_b32 v11, 7, v0")
    I("v_lshrrev_b32 v12, 4, v0")
    I("s_cmp_ge_u32 s15, 14")
    I("s_cbranch_scc1 HELPER")
    I("s_mul_i32 s12, s14, 7")
    I("s_lshr_b32 s11, s15, 1")
    I("s_add_u32 s12, s12, s11")
    I("s_and_b32 s13, s15, 1")
    I("s_mov_b32 s10, s13")
    I("s_cmp_lt_u32 s17, 4")
    I("s_cbranch_scc1 W_COMPUTE")
    I("s_sub_u32 s16, s17, 4")
    I(f"s_mul_i32 s46, s16, {16*7168}")
    I("s_lshl_b32 s47, s12, 7")
    I("s_add_u32 s46, s46, s47")
    I("v_and_b32 v13, 1, v12")
    I("v_lshlrev_b32 v13, 2, v13")
    I("v_xor_b32 v13, v13, v11")
    I("v_lshlrev_b32 v13, 4, v13")
    I("v_mul_u32_u24 v14, 7168, v10")
    I("v_add3_u32 v2, v13, v14, s46")
    I(f"v_add_u32 v3, {8*7168-1024}, v2")
    I("s_lshl_b32 s46, s13, 17")
    I("s_lshl_b32 s47, s16, 15")
    I("s_add_u32 s46, s46, s47")
    I("v_xor_b32 v13, v12, v11")
    I("v_lshlrev_b32 v13, 4, v13")
    I("v_lshlrev_b32 v14, 11, v10")
    I("v_add3_u32 v4, v13, v14, s46")
    I("v_xor_b32 v5, 64, v4")
    I(f"v_add_u32 v5, {8*2048-1024}, v5")
    I("s_lshl_b32 s46, s16, 11")
    I("s_mov_b32 s50, 0")
    I("s_add_u32 s51, s46, 8192")
    I("s_mov_b32 s48, 0")
    def issue_g():
        I("s_mov_b32 m0, s51")
        I("s_lshl_b32 s49, s50, 7")
        I("buffer_load_dwordx4 v2, s[24:27], s48 offen lds")
        I("buffer_load_dwordx4 v3, s[24:27], s48 offen offset:1024 lds")
    def issue_ux():
        I("s_add_u32 m0, s51, 8192")
        I("s_add_u32 s50, s50, 1")
        I("buffer_load_dwordx4 v2, s[28:31], s48 offen lds")
        I("buffer_load_dwordx4 v3, s[28:31], s48 offen offset:1024 lds")
        I("s_sub_u32 m0, s51, 8192")
        I("s_and_b32 s52, s50, 3")
        I("buffer_load_dwordx4 v4, s[20:23], s49 offen lds")
        I("buffer_load_dwordx4 v5, s[20:23], s49 offen offset:1024 lds")
        I("s_mul_i32 s52, s52, 24576")
        I("s_add_u32 s51, s52, s53")
        I(f"s_add_u32 s48, s48, {CH}")
    I("s_mov_b32 s53, s51")
    I("s_waitcnt lgkmcnt(0)")
    L("L_PRO")
    if o.setupearly:
        issue_g(); issue_ux(); issue_g()
    else:
        issue_g(); issue_ux()
        I("s_cmp_lt_u32 s50, 2")
        I("s_cbranch_scc1 L_PRO")
        issue_g()
    I("s_branch L_SETUP")
    L("HELPER")
    I("s_sub_u32 s16, s15, 14")
    I("s_cmp_lg_u32 s17, 0")
    I("s_cbranch_scc1 H_WD")
    I("s_cmp_ge_u32 s16, 16")
    I("s_cbranch_scc1 H_X")
    I("v_min_u32 v13, 6, v11")
    I("v_lshlrev_b32 v13, 7, v13")
    I("v_mul_u32_u24 v14, 7168, v10")
    I("s_mul_i32 s47, s14, 896")
    I("s_lshr_b32 s48, s16, 1")
    I(f"s_mul_i32 s48, s48, {8*7168}")
    I("s_add_u32 s47, s47, s48")
    I("v_add3_u32 v13, v13, v14, s47")
    I(f"s_mov_b32 s49, {CH}")
    I("s_bitcmp1_b32 s16, 0")
    I("s_waitcnt lgkmcnt(0)")
    if o.tlbw: I("s_mov_b64 s[86:87], s[24:25]")
    I("s_cselect_b32 s24, s28, s24")
    I("s_cselect_b32 s25, s29, s25")
    I("s_branch H_GO")
    L("H_X")
    I("s_and_b32 s47, s16, 1")
    I("s_lshl_b32 s47, s47, 17")
    I("v_lshlrev_b32 v13, 11, v0")
    I("v_add_u32 v13, s47, v13")
    I("s_mov_b32 s49, 128")
    I("s_mov_b32 s26, s22")
    I("s_waitcnt lgkmcnt(0)")
    if o.tlbw: I("s_mov_b64 s[86:87], s[24:25]")
    I("s_mov_b32 s24, s20")
    I("s_mov_b32 s25, s21")
    L("H_GO")
    I("s_mov_b32 s48, 0")
    if o.tlbw:
        I("v_min_u32 v14, 6, v11")
        I("v_lshlrev_b32 v14, 20, v14")
        I("global_load_dword v17, v14, s[86:87]")
        I("global_load_dword v17, v14, s[28:29]")
        I("global_load_dword v17, v14, s[36:37]")
    for c in range(16):
        I("buffer_load_dword v16, v13, s[24:27], s48 offen")
        if c < 15: I("s_add_u32 s48, s48, s49")
        for (ix, n) in o.rampw:
            if ix == c: I(f"s_waitcnt vmcnt({n})")
        if c == o.ftouch:
            I("s_cmp_lg_u32 s16, 17")
            I("s_cbranch_scc1 H_NF")
            I("s_mul_i32 s46, s14, 7168")
            I(f"s_add_u32 s46, s46, {FLAG_OFF + FLAGL}")
            I("v_min_u32 v15, 55, v0")
            I("v_lshl_add_u32 v15, v15, 7, s46")
            I("global_load_dword v17, v15, s[32:33]")
            L("H_NF")
        if o.xpre and c == o.xpre[1]:
            I("s_sub_u32 s46, s14, 1")
            I(f"s_cmp_ge_u32 s46, {o.xpre[2]}")
            I("s_cbranch_scc1 H_NX")
            I("s_cmp_ge_u32 s16, 16")
            I("s_cbranch_scc1 H_NX")
            I("s_movk_i32 s47, 1792")
            I("s_cmp_eq_u32 s46, 0")
            I("s_cselect_b32 s47, -896, s47")
            I("v_add_u32 v14, s47, v13")
            for cc in range(o.xpre[0]):
                I(f"s_mov_b32 s46, {cc*CH}")
                I("buffer_load_dword v16, v14, s[24:27], s46 offen")
            if len(o.xpre) > 3:
                I("s_cmp_ge_u32 s14, 3")
                I("s_cbranch_scc1 H_NX")
                I(f"v_add_u32 v14, {5*896}, v13")
                for cc in range(o.xpre[3]):
                    I(f"s_mov_b32 s46, {cc*CH}")
                    I("buffer_load_dword v16, v14, s[24:27], s46 offen")
            L("H_NX")
    I("s_branch H_WD")
    L("DONE")
    I("s_endpgm")

    WF, HF, ACC = 128, 16, 8
    L("P2SETUP")
    I("s_mov_b32 s8, 0")
    I("s_mov_b32 s54, 0")
    I(f"s_mov_b32 s34, {WS_BYTES}")
    I("s_mov_b32 s35, 0x20000")
    I(f"s_mov_b32 s38, {WB}")
    I("s_mov_b32 s39, 0x20000")
    I(f"s_mov_b32 s42, {XB}")
    I("s_mov_b32 s43, 0x20000")
    I("s_movk_i32 s95, 0xfff")
    I("v_lshlrev_b32 v240, 4, v0")
    I("v_mov_b32 v249, 0")
    I("s_lshl_b32 s46, s14, 2")
    I("s_add_u32 s46, s46, s10")
    I("s_mul_i32 s46, s46, 1792")
    I(f"s_add_u32 s80, s46, {FLAG_OFF}")
    I("s_lshl_b32 s47, s17, 2")
    I("v_and_b32 v246, 3, v0")
    I("v_add_u32 v246, s47, v246")
    I("v_min_u32 v246, 13, v246")
    I("v_lshlrev_b32 v246, 7, v246")
    I("v_bfe_u32 v251, v0, 2, 1")
    if o.twinonly:
        I("v_lshl_add_u32 v254, v251, 16, v246")
        I(f"v_add_u32 v246, {FLAGL}, v246")
    else:
        I("v_lshl_add_u32 v246, v251, 16, v246")
    I("s_mul_i32 s46, s10, 224")
    I("s_add_u32 s47, s46, s47")
    I("s_mul_i32 s46, s14, 14")
    I("s_add_u32 s46, s46, s47")
    I("s_lshl_b32 s46, s46, 10")
    I(f"s_add_u32 s81, s46, {H_OFF}")
    I(f"s_add_u32 s82, s81, {112*1024 - 1024}")
    I("s_sub_u32 s83, s81, 1024")
    I("s_sub_u32 s84, s82, 1024")
    I("s_lshl_b32 s46, s17, 13")
    I(f"s_add_u32 s85, s46, {LH}")
    I("v_bfe_u32 v251, v0, 2, 3")
    I("v_lshrrev_b32 v252, 5, v0")
    I("v_lshl_add_u32 v252, v252, 4, v251")
    I("v_lshlrev_b32 v252, 8, v252")
    I("s_and_b32 s46, s17, 6")
    I("v_xor_b32 v251, s46, v251")
    I("v_lshl_add_u32 v252, v251, 5, v252")
    I("v_and_b32 v251, 3, v0")
    I("v_lshl_add_u32 v244, v251, 3, v252")
    I(f"v_add_u32 v242, {LE}, v244")
    I("v_xor_b32 v245, 32, v244")
    I("v_xor_b32 v243, 32, v242")
    I("s_and_b32 s46, s17, 1")
    I("s_lshl_b32 s46, s46, 10")
    I(f"s_add_u32 s46, s46, {LH}")
    I("v_add_u32 v241, s46, v240")
    I("s_lshl_b32 s47, s10, 3")
    I("s_add_u32 s47, s47, s11")
    I("s_lshl_b32 s47, s47, 3")
    I("s_add_u32 s46, s47, s17")
    I("s_lshl_b32 s86, s46, 4")
    I("s_add_u32 s86, s86, s14")
    I("s_lshl_b32 s86, s86, 10")
    I(f"s_add_u32 s86, s86, {PART_OFF}")
    I("s_add_u32 s87, s86, 8192")
    I("s_lshl_b32 s90, s46, 3")
    I("s_add_u32 s90, s90, s14")
    I("s_lshl_b32 s90, s90, 7")
    I(f"s_add_u32 s90, s90, {FLAG2_OFF}")
    I("s_add_u32 s46, s47, s14")
    I("s_lshl_b32 s91, s46, 10")
    I(f"s_add_u32 s91, s91, {FLAG2_OFF}")
    I("s_lshl_b32 s46, s46, 1")
    I("s_and_b32 s9, s17, 1")
    if not o.exp_half: I("s_add_u32 s46, s46, s9")
    I("s_lshl_b32 s46, s46, 13")
    I(f"s_add_u32 s88, s46, {PART_OFF}")
    I("s_add_u32 s89, s88, 4096")
    I("v_min_u32 v247, 7, v0")
    I("v_lshlrev_b32 v247, 7, v247")
    I("s_lshl_b32 s46, s10, 1")
    I("s_and_b32 s47, s14, 1")
    I("s_add_u32 s46, s46, s47")
    I("s_lshl_b32 s92, s46, 15")
    I("s_lshl_b32 s46, s11, 2")
    I("s_lshr_b32 s47, s14, 1")
    I("s_add_u32 s46, s46, s47")
    I("s_lshl_b32 s46, s46, 1")
    I("s_add_u32 s46, s46, s9")
    I("s_lshl_b32 s46, s46, 5")
    I("s_add_u32 s92, s92, s46")
    if o.g4:
        I("s_bfe_u32 s46, s17, 0x10001")
        I("s_lshl_b32 s46, s46, 5")
        I("v_and_b32 v251, 31, v0")
        I("v_add_u32 v251, s46, v251")
        I("v_lshrrev_b32 v252, 5, v0")
        I("v_lshlrev_b32 v252, 10, v252")
        I("v_lshl_add_u32 v253, v251, 4, v252")
        I("v_and_b32 v248, 15, v0")
        I("v_lshlrev_b32 v248, 11, v248")
        I("v_lshrrev_b32 v251, 4, v251")
        I("v_lshl_add_u32 v248, v251, 3, v248")
    else:
        I("v_and_b32 v248, 15, v0")
        I("v_lshlrev_b32 v248, 11, v248")
        I("v_lshl_add_u32 v248, v12, 3, v248")
    I(f"s_mul_i32 s46, s14, {448*2048}")
    I("s_lshl_b32 s47, s11, 8")
    I("s_add_u32 s94, s46, s47")
    I("v_mov_b32 v6, 0")
    I("v_mov_b32 v7, 0")
    I("v_and_b32 v251, 1, v0")
    I("v_mul_u32_u24 v251, 14, v251")
    I("v_bfe_u32 v252, v0, 1, 1")
    I("v_add_lshl_u32 v250, v251, v252, 7")
    I("s_lshl_b32 s46, s14, 1")
    I("s_and_b32 s47, s15, 1")
    I("s_add_u32 s46, s46, s47")
    I("s_mul_i32 s46, s46, 14")
    I("s_add_u32 s46, s46, s11")
    I("s_lshl_b32 s46, s46, 8")
    I(f"s_add_u32 s3, s46, {FLAG_OFF}")
    I("s_setpc_b64 s[6:7]")
    def call_setup(ret):
        I("s_call_b64 s[6:7], P2SETUP")

    L("H_WD")
    I("s_lshr_b32 s11, s16, 1")
    I("s_and_b32 s10, s16, 1")
    I("s_add_u32 s10, s10, 2")
    I("s_sub_u32 s47, s16, 14")
    I("s_cmp_ge_u32 s16, 14")
    I("s_cselect_b32 s11, 7, s11")
    I("s_cselect_b32 s10, s47, s10")
    call_setup("H_RET")
    I("s_lshl_b32 s47, s17, 13")
    I("s_add_u32 s46, s94, s47")
    I("s_and_b32 s47, s17, 1")
    I("s_lshl_b32 s47, s47, 2")
    I("v_add_u32 v13, s47, v12")
    I("v_lshlrev_b32 v13, 1, v13")
    I("v_and_b32 v14, 15, v0")
    I("v_xor_b32 v13, v13, v14")
    I("v_lshlrev_b32 v13, 4, v13")
    I("v_lshlrev_b32 v14, 11, v12")
    I("v_add3_u32 v2, v13, v14, s46")
    I("s_lshl_b32 s52, s17, 10")
    I("s_and_b32 s51, s10, 1")
    I("s_mul_i32 s51, s51, 7")
    I("s_mov_b32 s50, 0")
    I("s_waitcnt lgkmcnt(0)")
    stamp0()
    I("s_barrier")
    stamp(1)
    I("global_load_dwordx2 v[84:85], v249, s[44:45] sc1")
    L("HW_LOOP")
    I("s_lshl_b32 s47, s51, 13")
    I(f"s_add_u32 s48, s47, {LE}")
    I("s_sub_u32 s47, s47, 65536")
    I("s_cmp_lt_u32 s51, 8")
    I("s_cselect_b32 s47, s48, s47")
    I("s_add_u32 m0, s47, s52")
    I("s_lshl_b32 s48, s51, 16")
    I("buffer_load_dwordx4 v2, s[36:39], s48 offen lds")
    I("s_add_u32 s51, s51, 1")
    I("s_cmp_eq_u32 s51, 14")
    I("s_cselect_b32 s51, 0, s51")
    I("s_add_u32 s50, s50, 1")
    I("s_cmp_lg_u32 s50, 7")
    I("s_cbranch_scc1 HW_NB")
    I("s_barrier")
    L("HW_NB")
    I("s_cmp_lt_u32 s50, 14")
    I("s_cbranch_scc1 HW_LOOP")
    if o.prew:
        for i in range(4): I(f"v_mov_b32 v{8+i}, 0")
        I("buffer_store_dwordx4 v[8:11], v240, s[32:35], s86 offen sc1")
        I("buffer_store_dwordx4 v[8:11], v240, s[32:35], s87 offen sc1")
        I("s_waitcnt vmcnt(2)")
    else:
        I("s_waitcnt vmcnt(0)")
    stamp(5)
    I("s_branch P_B1")
    L("L_SETUP")
    call_setup("L_RET")
    I("s_lshl_b32 s47, s16, 14")
    I("s_add_u32 s46, s94, s47")
    I("v_lshlrev_b32 v13, 1, v12")
    I("v_and_b32 v14, 15, v0")
    I("v_xor_b32 v13, v13, v14")
    I("v_lshlrev_b32 v13, 4, v13")
    I("v_lshlrev_b32 v14, 11, v12")
    I("v_add3_u32 v6, v13, v14, s46")
    I("v_xor_b32 v7, 128, v6")
    I(f"v_add_u32 v7, {4*2048-1024}, v7")
    stamp0()
    if o.setupearly:
        issue_ux(); issue_g()
    if "l" in o.al: a.C("AL_ON")
    L("L_LOOP")
    I("s_waitcnt vmcnt(8)")
    I("s_barrier")
    issue_ux()
    I("s_cmp_eq_u32 s50, 16")
    I("s_cbranch_scc1 L_TAIL")
    issue_g()
    I("s_branch L_LOOP")
    L("L_TAIL")
    I("global_load_dwordx2 v[84:85], v249, s[44:45] sc1")
    def lw(lab, upto):
        L(lab)
        I("buffer_load_dwordx4 v6, s[36:39], s48 offen lds")
        I("buffer_load_dwordx4 v7, s[36:39], s48 offen offset:1024 lds")
        I("s_add_u32 s48, s48, 65536")
        I("s_add_u32 m0, m0, 8192")
        I(f"s_cmp_eq_u32 s48, {8*65536}")
        I("s_cselect_b32 m0, s52, m0")
        I(f"s_cmp_lt_u32 s48, {upto*65536}")
        I(f"s_cbranch_scc1 {lab}")
    n1, n2 = o.early
    assert n1 <= n2 <= 8
    I("s_lshl_b32 s52, s16, 11")
    I(f"s_add_u32 m0, s52, {LE}")
    I("s_mov_b32 s48, 0")
    if n1: lw("LW_E1", n1)
    I(f"s_waitcnt vmcnt({7 + 2*n1})")
    I("s_barrier")
    if n2 > n1: lw("LW_E2", n2)
    I(f"s_waitcnt vmcnt({1 + 2*n2})")
    I("s_barrier")
    stamp(2)
    if o.hold:
        lw("LW_LOOP0", o.hold)
        I("s_barrier")
    lw("LW_LOOP", o.wsplit)
    stamp(3)
    I(f"s_waitcnt vmcnt({0 if o.onebar else 2*(o.wsplit-7)})")
    stamp(4)
    I("s_branch P_B1")
    a.C("AL_OFF")
    def poll(): I("buffer_load_dwordx2 v[86:87], v246, s[32:35], s80 offen sc1")
    def check():
        I("s_waitcnt vmcnt(0)")
        I("v_cmp_eq_u64 vcc, v[84:85], v[86:87]")
        I("s_lshr_b32 s46, vcc_lo, 4")
        I("s_or_b32 s46, s46, vcc_lo")
        I("s_and_b32 s46, s46, 15")
        I("s_cmp_eq_u32 s46, 15")
    def trds(lo, hi):
        for kb in range(lo, hi):
            if kb - lo >= 3 or lo: I("s_waitcnt lgkmcnt(8)")
            for t in range(2):
                b, off = ((242, 243)[t], kb*8192) if kb < 8 else ((244, 245)[t], (kb-8)*8192)
                f = WF + 8*kb + 4*t
                I(f"ds_read_b64_tr_b16 v[{f}:{f+1}], v{b} offset:{off}")
                I(f"ds_read_b64_tr_b16 v[{f+2}:{f+3}], v{b} offset:{off+2048}")
    def hdma(k):
        I("s_mov_b32 m0, s85")
        I("s_mov_b32 s9, 1")
        I("buffer_load_dwordx4 v240, s[32:35], s81 offen sc1 lds")
        I("buffer_load_dwordx4 v240, s[32:35], s82 offen offset:1024 sc1 lds")
        I("buffer_load_dwordx4 v240, s[32:35], s83 offen offset:2048 sc1 lds")
        I("buffer_load_dwordx4 v240, s[32:35], s84 offen offset:3072 sc1 lds")
        I("s_cmp_eq_u32 s17, 3")
        I(f"s_cbranch_scc1 P_H{k}")
        I("s_add_u32 m0, s85, 4096")
        I("v_add_u32 v251, 2048, v240")
        I("buffer_load_dwordx4 v251, s[32:35], s81 offen sc1 lds")
        I("buffer_load_dwordx4 v251, s[32:35], s82 offen offset:1024 sc1 lds")
        I("buffer_load_dwordx4 v251, s[32:35], s83 offen offset:2048 sc1 lds")
        I("buffer_load_dwordx4 v251, s[32:35], s84 offen offset:3072 sc1 lds")
        L(f"P_H{k}")
    L("W_COMPUTE")
    call_setup("W_RET")
    I("s_or_b32 s46, s2, s17")
    I("s_cmp_lg_u32 s46, 0")
    I("s_cbranch_scc1 W_NT")
    I("s_waitcnt lgkmcnt(0)")
    I("v_mov_b32 v84, s56")
    I("v_mov_b32 v85, s57")
    I("global_store_dwordx2 v249, v[84:85], s[44:45] sc1")
    L("W_NT")
    I("s_and_b32 s18, s17, 1")
    I("s_lshr_b32 s19, s17, 1")
    I("v_and_b32 v13, 31, v0")
    I("v_lshrrev_b32 v14, 5, v0")
    I("v_bfe_u32 v15, v0, 1, 3")
    I("v_xor_b32 v15, v15, v14")
    I("v_lshlrev_b32 v15, 4, v15")
    I("v_lshl_add_u32 v15, v13, 7, v15")
    I("s_lshl_b32 s46, s18, 12")
    I("v_add_u32 v16, s46, v15")
    for t in range(1, 4): I(f"v_xor_b32 v{16+t}, {32*t}, v16")
    for t in range(4): I(f"v_add_u32 v{20+t}, 49152, v{16+t}")
    I("v_bfe_u32 v13, v0, 2, 2")
    I("v_lshl_add_u32 v15, v14, 3, v13")
    I("v_lshlrev_b32 v15, 7, v15")
    I("v_bfe_u32 v13, v0, 3, 1")
    I("v_xor_b32 v13, s19, v13")
    I("v_lshl_add_u32 v15, v13, 6, v15")
    I("v_and_b32 v13, 1, v12")
    I("v_lshl_add_u32 v15, v13, 5, v15")
    I("v_and_b32 v13, 3, v0")
    I("v_lshl_add_u32 v15, v13, 3, v15")
    I("v_add_u32 v24, 8192, v15")
    I(f"v_add_u32 v25, {8192+49152}, v15")
    G, U, FR = 96, 112, 32
    for i in list(range(G, G+32)) + list(range(FR+24, FR+48)): I(f"v_mov_b32 v{i}, 0")
    I("s_lshl_b32 s46, s13, 2")
    I("s_lshl_b32 s47, s18, 1")
    I("s_add_u32 s46, s46, s47")
    I("s_mul_i32 s46, s46, 112")
    I("s_lshl_b32 s47, s12, 1")
    I("s_add_u32 s46, s46, s47")
    I("s_add_u32 s46, s46, s19")
    I("s_lshl_b32 s46, s46, 10")
    I(f"s_add_u32 s46, s46, {H_OFF}")
    I("v_and_b32 v13, 1, v12")
    I(f"v_mul_u32_u24 v13, {112*1024}, v13")
    I("v_lshl_add_u32 v13, v14, 8, v13")
    I("v_and_b32 v15, 15, v0")
    I("v_lshl_add_u32 v13, v15, 4, v13")
    I("v_add_u32 v26, s46, v13")
    I("v_mov_b32 v30, 0xbfb8aa3b")
    I("v_mov_b32 v31, 0xbfb8aa3b")
    I("v_mov_b32 v80, 1.0")
    I("v_mov_b32 v81, 1.0")
    I("s_lshl_b32 s46, s14, 1")
    I("s_add_u32 s46, s46, s13")
    I("s_lshl_b32 s46, s46, 1")
    I("s_add_u32 s46, s46, s18")
    I("s_mul_i32 s46, s46, 14")
    I("s_lshl_b32 s47, s11, 1")
    I("s_add_u32 s46, s46, s47")
    I("s_add_u32 s46, s46, s19")
    I("s_lshl_b32 s46, s46, 7")
    I(f"s_add_u32 s93, s46, {FLAG_OFF + FLAGL}")
    I("s_mov_b32 s50, 0")
    I("s_waitcnt lgkmcnt(0)")
    stamp0()
    def R(slot, t):
        g, lo = slot // 2, (slot % 2) * 24576
        f = FR + 12*t
        xa, wa = 16+4*g+t, 24+g
        return [f"ds_read_b128 v[{f}:{f+3}], v{xa} offset:{lo}",
                f"ds_read_b64_tr_b16 v[{f+4}:{f+5}], v{wa} offset:{lo+t*2048}",
                f"ds_read_b64_tr_b16 v[{f+6}:{f+7}], v{wa} offset:{lo+t*2048+512}",
                f"ds_read_b64_tr_b16 v[{f+8}:{f+9}], v{wa} offset:{lo+t*2048+8192}",
                f"ds_read_b64_tr_b16 v[{f+10}:{f+11}], v{wa} offset:{lo+t*2048+8192+512}"]
    def Mg(t):
        f = FR + 12*t
        I(f"v_mfma_f32_32x32x16_bf16 v[{G}:{G+15}], v[{f+4}:{f+7}], v[{f}:{f+3}], v[{G}:{G+15}]")
    def Mu(t):
        f = FR + 12*t
        I(f"v_mfma_f32_32x32x16_bf16 v[{U}:{U+15}], v[{f+8}:{f+11}], v[{f}:{f+3}], v[{U}:{U+15}]")
    def chunk(sl, pre=None, post=None):
        I("s_barrier")
        if pre: pre()
        rs = R(sl, 0) + R(sl, 1) + R(sl, 2) + R(sl, 3)
        def r(n):
            for _ in range(n): I(rs.pop(0))
        Mg(2); r(3); Mu(2); r(3); Mg(3); r(3); Mu(3); r(3)
        I("s_waitcnt lgkmcnt(7)")
        Mg(0); r(3); Mu(0); r(3)
        I("s_waitcnt lgkmcnt(8)")
        Mg(1); r(2); Mu(1)
        if post: post()
        I("s_waitcnt lgkmcnt(0)")
    def st_shift():
        if full:
            I("s_memrealtime s[58:59]")
            I("s_waitcnt lgkmcnt(0)")
            I("s_mov_b32 s65, s66"); I("s_mov_b32 s66, s67"); I("s_mov_b32 s67, s68"); I("s_mov_b32 s68, s58")
    if "c" in o.al: a.C("AL_ON")
    L("C_LOOP")
    chunk(0, pre=st_shift); chunk(1); chunk(2)
    chunk(3, post=lambda: (I("s_add_u32 s50, s50, 1"), I("s_cmp_lt_u32 s50, 3")))
    I("s_cbranch_scc1 C_LOOP")
    chunk(0, pre=lambda: (st_shift(), I("global_load_dwordx2 v[84:85], v249, s[44:45] sc1")))
    chunk(1); chunk(2)
    Mg(2); Mu(2); Mg(3); Mu(3)
    I("s_barrier")
    stamp(5)
    r = [R(3, t) for t in range(4)]
    q = [r[t][i] for t in range(4) for i in (0, 1, 2)] + [r[t][i] for t in range(4) for i in (3, 4)]
    for x in q[:15]: I(x)
    I("s_waitcnt lgkmcnt(12)"); Mg(0); I(q[15]); I(q[16]); I(q[17])
    I("s_waitcnt lgkmcnt(12)"); Mg(1); I(q[18]); I(q[19])
    I("s_waitcnt lgkmcnt(11)"); Mg(2)
    I("s_waitcnt lgkmcnt(8)"); Mg(3)
    I("s_waitcnt lgkmcnt(6)"); Mu(0)
    I("s_waitcnt lgkmcnt(4)"); Mu(1)
    I("s_waitcnt lgkmcnt(0)"); Mu(2)
    I("s_nop 5")
    a.C("AL_OFF")
    if "e" in o.al: a.C("AL_ON")
    T = 200
    def op2(op, d, x, y):
        if o.pk: I(f"v_pk_{op}_f32 v[{d}:{d+1}], v[{x}:{x+1}], v[{y}:{y+1}]")
        else:
            for e in range(2): I(f"v_{op}_f32 v{d+e}, v{x+e}, v{y+e}")
    for i in range(0, 8, 2): op2("mul", T+i, 30, G+i)
    Mu(3)
    for i in range(8, 16, 2): op2("mul", T+i, 30, G+i)
    if not o.ilv:
        for p in range(2):
            for i in range(8*p, 8*p+8): I(f"v_exp_f32 v{T+i}, v{T+i}")
            I("s_nop 0")
            for i in range(8*p, 8*p+8, 2): op2("add", T+i, 80, T+i)
            for i in range(8*p, 8*p+8): I(f"v_rcp_f32 v{T+i}, v{T+i}")
            for i in range(8*p, 8*p+8, 2): op2("mul", G+i, G+i, U+i)
            for i in range(8*p, 8*p+8, 2): op2("mul", G+i, G+i, T+i)
            for i in range(4): I(f"v_cvt_pk_bf16_f32 v{88+4*p+i}, v{G+8*p+2*i}, v{G+8*p+2*i+1}")
            I(f"buffer_store_dwordx4 v[{88+4*p}:{91+4*p}], v26, s[32:35], 0 offen offset:{512*p} sc1")
    else:
        for i in range(8): I(f"v_exp_f32 v{T+i}, v{T+i}")
        for i in range(8):
            I(f"v_exp_f32 v{T+8+i}, v{T+8+i}")
            if i % 2 == 1: op2("add", T+i-1, 80, T+i-1)
        for i in range(8):
            I(f"v_rcp_f32 v{T+i}, v{T+i}")
            if i % 2 == 1: op2("add", T+8+i-1, 80, T+8+i-1)
            else: op2("mul", G+i, G+i, U+i)
        for i in range(8):
            I(f"v_rcp_f32 v{T+8+i}, v{T+8+i}")
            if i % 2 == 1:
                op2("mul", G+i-1, G+i-1, T+i-1)
                I(f"v_cvt_pk_bf16_f32 v{88+i//2}, v{G+i-1}, v{G+i}")
            else: op2("mul", G+8+i, G+8+i, U+8+i)
        I(f"buffer_store_dwordx4 v[88:91], v26, s[32:35], 0 offen sc1")
        for i in range(8, 16, 2): op2("mul", G+i, G+i, T+i)
        for i in range(4): I(f"v_cvt_pk_bf16_f32 v{92+i}, v{G+8+2*i}, v{G+8+2*i+1}")
        I(f"buffer_store_dwordx4 v[92:95], v26, s[32:35], 0 offen offset:512 sc1")
    a.C("AL_OFF")
    if o.hold: I("s_barrier")
    stamp(6)
    I("s_barrier")
    trds(0, 7)
    L("W_TAG")
    I("s_waitcnt vmcnt(0)")
    I("v_cmp_ne_u64 vcc, 0, v[84:85]")
    I("s_cbranch_vccnz W_FLAG")
    spin("DONE2")
    I("global_load_dwordx2 v[84:85], v249, s[44:45] sc1")
    I("s_branch W_TAG")
    L("W_FLAG")
    I("buffer_store_dwordx2 v[84:85], v249, s[32:35], s93 offen")
    stamp(7)
    I("s_mov_b32 s9, 0")
    poll()
    I("s_branch P_B2")
    L("P_B1")
    I("v_cmp_ne_u64 vcc, 0, v[84:85]")
    I("s_cbranch_vccnz P_TAGOK")
    spin("DONE2")
    I("global_load_dwordx2 v[84:85], v249, s[44:45] sc1")
    I("s_waitcnt vmcnt(0)")
    I("s_branch P_B1")
    L("P_TAGOK")
    I("s_barrier")
    stamp(8)
    if o.wsplit < 14:
        I("s_cmp_ge_u32 s15, 14")
        I("s_cbranch_scc1 P_NL")
        lw("LW_LOOP2", 14)
        L("P_NL")
    trds(0, 7)
    I("s_cmp_ge_u32 s17, 4")
    I("s_cselect_b32 s9, 1, 0")
    I("s_cbranch_scc0 P_NW")
    I("s_waitcnt vmcnt(0)")
    I("s_branch P_B2")
    L("P_NW")
    poll()
    L("P_B2")
    I("s_barrier")
    stamp(9)
    def publish(lab):
        I("s_cmp_ge_u32 s15, 14")
        I(f"s_cbranch_scc1 {lab}")
        I("buffer_store_dwordx2 v[84:85], v250, s[32:35], s3 offen sc1")
        L(lab)
    I("v_and_b32 v92, s95, v84")
    I("v_bfe_u32 v93, v84, 12, 12")
    I("v_alignbit_b32 v94, v85, v84, 24")
    I("v_and_b32 v94, s95, v94")
    I("v_bfe_u32 v95, v85, 4, 12")
    for r in (93, 94, 95): I(f"v_xor_b32 v{r}, v{r}, v92")
    def try_h(k):
        I("s_cmp_eq_u32 s9, 1")
        I(f"s_cbranch_scc1 P_S{k}")
        check()
        I(f"s_cbranch_scc0 P_F{k}")
        hdma(k)
        I(f"s_branch P_S{k}")
        L(f"P_F{k}")
        poll()
        L(f"P_S{k}")
    if not o.pollfirst:
        lo = 7
        for k, c in enumerate(o.cuts):
            trds(lo, c); try_h(k); lo = c
        trds(lo, 14)
    I("s_cmp_eq_u32 s9, 1")
    I("s_cbranch_scc1 P_RD")
    I("s_branch P_CHK")
    L("P_SLEEP")
    if o.sleep: I(f"s_sleep {o.sleep}")
    if o.twinonly:
        I("s_add_u32 s54, s54, 1")
        I(f"s_cmp_lg_u32 s54, {o.thr}")
        I("s_cbranch_scc1 P_TW")
        I("v_mov_b32 v246, v254")
        publish("P_TW")
    poll()
    spin("DONE2")
    L("P_CHK")
    check()
    I("s_cbranch_scc0 P_SLEEP")
    hdma(3)
    L("P_RD")
    if o.pollfirst: trds(7, 14)
    for i in range(8): I(f"v_mov_b32 v{ACC+i}, 0")
    I("s_cmp_lt_u32 s17, 4")
    I("s_cbranch_scc1 P_WH")
    if o.prio: I("s_setprio 1")
    I("s_branch P_Y")
    L("P_WH")
    I("s_waitcnt vmcnt(0)")
    L("P_Y")
    I("s_waitcnt lgkmcnt(0)")
    I("s_barrier")
    stamp(10)
    if o.pubat == "y":
        I("s_cmp_lg_u32 s17, 3")
        I("s_cbranch_scc1 P_N7")
        publish("P_N7")
    def notify(pos):
        lo, hi = o.hint == pos, o.hint2 == pos
        if not (lo or hi): return
        if not (lo and hi):
            I(f"s_cmp_{'lt' if hi else 'ge'}_u32 s17, 4")
            I(f"s_cbranch_scc1 P_NN{pos+1}")
        I("buffer_store_dwordx2 v[84:85], v249, s[32:35], s90 offen sc1")
        if not (lo and hi): L(f"P_NN{pos+1}")
    for kb in range(14): I(f"ds_read_b128 v[{HF+4*kb}:{HF+4*kb+3}], v241 offset:{2048*kb}")
    notify(-1)
    for kb in range(14):
        I(f"s_waitcnt lgkmcnt({13-kb})")
        for t in range(2):
            f = WF + 8*kb + 4*t
            I(f"v_mfma_f32_16x16x32_bf16 v[{ACC+4*t}:{ACC+4*t+3}], v[{f}:{f+3}], v[{HF+4*kb}:{HF+4*kb+3}], v[{ACC+4*t}:{ACC+4*t+3}]")
        notify(kb)
    I("s_nop 6")
    for t in range(2):
        for i in range(4): I(f"v_add_u32 v{ACC+4*t+i}, 0x800, v{ACC+4*t+i}")
        for i in range(4): I(f"v_bfi_b32 v{ACC+4*t+i}, s95, v{92+i}, v{ACC+4*t+i}")
        if not (o.exp_half and t == 1): I(f"buffer_store_dwordx4 v[{ACC+4*t}:{ACC+4*t+3}], v240, s[32:35], s{86+t} offen sc1")
    notify(14)
    if o.xw:
        I("s_cmp_ge_u32 s17, 4")
        I("s_cbranch_scc1 XW_N")
        I("s_mov_b32 s34, 0x8000000")
        I("s_lshl_b32 s46, s2, 2")
        I("s_add_u32 s46, s46, s17")
        I(f"s_mul_i32 s46, s46, {o.xw*1024}")
        I(f"s_add_u32 s46, s46, {16<<20}")
        for i in range(o.xw):
            I("buffer_store_dwordx4 v[16:19], v240, s[32:35], s46 offen sc1")
            I("s_add_u32 s46, s46, 1024")
        L("XW_N")
    if o.pubat == "end":
        I("s_cmp_lg_u32 s17, 3")
        I("s_cbranch_scc1 P_N7")
        publish("P_N7")
    if o.amp is not None:
        I("s_lshl_b32 s46, s15, 3")
        I("s_add_u32 s46, s46, s14")
        I("s_lshl_b32 s46, s46, 7")
        I(f"s_add_u32 s46, s46, {(1<<20) + (3<<16)}")
        I("s_cmp_lg_u32 s17, 0")
        I("s_cbranch_scc1 AMP_NS")
        I("v_mov_b32 v20, s56")
        I("buffer_store_dword v20, v249, s[32:35], s46 offen sc1")
        L("AMP_NS")
    stamp(11)
    if o.stamps and o.stw not in (o.gw, o.gw+1):
        I(f"s_cmp_lg_u32 s17, {o.stw}")
        I("s_cbranch_scc1 P_ST")
        stamp_flush()
        L("P_ST")
    if o.spoll == 1:
        I("s_cmp_ge_u32 s17, 4")
        I("s_cbranch_scc1 G_START")
        I("s_barrier")
        I("s_endpgm")
        L("G_START")
    else:
        I("s_cmp_lt_u32 s17, 4")
        I("s_cbranch_scc1 DONE2")
    if o.spoll == 1:
        I("s_cmp_lg_u32 s17, 4")
        I("s_cbranch_scc1 G_GO")
    I("v_readfirstlane_b32 s55, v84")
    I("s_add_u32 s52, s32, s91")
    I("s_addc_u32 s53, s33, 0")
    L("G_NS")
    for i in range(8): I(f"s_load_dword s{80+i if i < 6 else 40+i}, s[52:53], {128*i} glc")
    spin("DONE2")
    I("s_waitcnt lgkmcnt(0)")
    regs = [80+i if i < 6 else 40+i for i in range(8)]
    I(f"s_xor_b32 s9, s{regs[0]}, s55")
    for r in regs[1:]:
        I(f"s_xor_b32 s{r}, s{r}, s55")
        I(f"s_or_b32 s9, s9, s{r}")
    I("s_cbranch_scc1 G_NS")
    if o.spoll == 1:
        L("G_GO")
        I("s_barrier")
    stamp(13)
    if full: I("s_mov_b32 s78, s64")
    L("G_POLL")
    if o.g4:
        for s in range(4):
            I(f"buffer_load_dwordx4 v[{16+4*s}:{19+4*s}], v253, s[32:35], s{88 + s//2} offen offset:{2048*(s%2)} sc1")
        if full: I("s_add_u32 s78, s78, 100")
        spin("DONE2")
        for s in range(4):
            I(f"s_waitcnt vmcnt({3-s})")
            for i in range(4): I(f"v_xor_b32 v{16+4*s+i}, v{92+i}, v{16+4*s+i}")
            if s == 0:
                I("v_or3_b32 v76, v16, v17, v18")
                I("v_or_b32 v76, v76, v19")
            else:
                I(f"v_or3_b32 v76, v76, v{16+4*s}, v{17+4*s}")
                I(f"v_or3_b32 v76, v76, v{18+4*s}, v{19+4*s}")
                I(f"v_pk_add_f32 v[16:17], v[16:17], v[{16+4*s}:{17+4*s}]")
                I(f"v_pk_add_f32 v[18:19], v[18:19], v[{18+4*s}:{19+4*s}]")
        for i in range(4): I(f"v_mov_b32 v{20+i}, v{16+i}")
        I("v_and_b32 v76, s95, v76")
        I("v_cmp_ne_u32 vcc, 0, v76")
        for i in range(4): I(f"v_permlane32_swap_b32 v{16+i}, v{20+i}")
        I("s_cbranch_vccnz G_POLL")
        I("v_pk_add_f32 v[16:17], v[16:17], v[20:21]")
        I("v_pk_add_f32 v[18:19], v[18:19], v[22:23]")
        I("s_mov_b32 exec_hi, 0")
        I("v_cvt_pk_bf16_f32 v48, v16, v17")
        I("v_cvt_pk_bf16_f32 v49, v18, v19")
        I(f"buffer_store_dwordx2 v[48:49], v248, s[40:43], s92 offen {o.outfl}")
        if o.stamps: I("s_mov_b64 exec, -1")
    else:
        for s in range(8):
            I(f"buffer_load_dwordx4 v[{16+4*s}:{19+4*s}], v240, s[32:35], s{88 + s//4} offen offset:{1024*(s%4)} sc1")
        if full: I("s_add_u32 s78, s78, 100")
        spin("DONE2")
        for s in range(8):
            I(f"s_waitcnt vmcnt({7-s})")
            for i in range(4): I(f"v_xor_b32 v{16+4*s+i}, v{92+i}, v{16+4*s+i}")
            if s == 0:
                I("v_or3_b32 v76, v16, v17, v18")
                I("v_or_b32 v76, v76, v19")
            else:
                I(f"v_or3_b32 v76, v76, v{16+4*s}, v{17+4*s}")
                I(f"v_or3_b32 v76, v76, v{18+4*s}, v{19+4*s}")
                I(f"v_pk_add_f32 v[16:17], v[16:17], v[{16+4*s}:{17+4*s}]")
                I(f"v_pk_add_f32 v[18:19], v[18:19], v[{18+4*s}:{19+4*s}]")
        I("v_and_b32 v76, s95, v76")
        I("v_cmp_ne_u32 vcc, 0, v76")
        I("v_cvt_pk_bf16_f32 v48, v16, v17")
        I("v_cvt_pk_bf16_f32 v49, v18, v19")
        I("s_cbranch_vccnz G_POLL")
        I(f"buffer_store_dwordx2 v[48:49], v248, s[40:43], s92 offen {o.outfl}")
    if o.ampskew:
        I("s_mov_b64 exec, -1")
        I("s_waitcnt vmcnt(0)")
        I("v_readfirstlane_b32 s60, v84")
        I("s_memrealtime s[62:63]")
        I("s_nop 3")
        I("s_sub_u32 s61, s60, s56" if o.ampskew > 0 else "s_sub_u32 s61, s56, s60")
        I("s_max_i32 s61, s61, 0")
        I("s_min_u32 s61, s61, 500")
        I("s_mul_i32 s61, s61, 20")
        if o.ampdie is not None:
            I(f"s_cmp_eq_u32 s14, {o.ampdie}")
            I("s_cselect_b32 s61, s61, 0")
        I("s_waitcnt lgkmcnt(0)")
        L("AMPS")
        I("s_memrealtime s[58:59]")
        I("s_waitcnt lgkmcnt(0)")
        I("s_sub_u32 s58, s58, s62")
        I("s_cmp_lt_u32 s58, s61")
        I("s_cbranch_scc1 AMPS")
    if o.ampat is not None:
        I("s_mov_b64 exec, -1")
        I("s_waitcnt vmcnt(0)")
        I("v_readfirstlane_b32 s60, v84")
        I("s_memrealtime s[70:71]")
        I("s_nop 3")
        I("s_sub_u32 s61, s62, s60")
        I("s_min_u32 s61, s61, 5000")
        I("s_mul_i32 s61, s61, 8")
        I("s_cmp_lt_u32 s15, 14")
        I("s_cselect_b32 s61, s61, 0")
        I("s_waitcnt lgkmcnt(0)")
        L("AMPA")
        I("s_memrealtime s[58:59]")
        I("s_waitcnt lgkmcnt(0)")
        I("s_sub_u32 s58, s58, s70")
        I("s_cmp_lt_u32 s58, s61")
        I("s_cbranch_scc1 AMPA")
    if o.delay:
        I("s_waitcnt vmcnt(0)")
        I("s_memrealtime s[60:61]")
        I("s_waitcnt lgkmcnt(0)")
        L("DLY")
        I("s_memrealtime s[58:59]")
        I("s_waitcnt lgkmcnt(0)")
        I("s_sub_u32 s58, s58, s60")
        I(f"s_cmp_lt_u32 s58, {o.delay}")
        I("s_cbranch_scc1 DLY")
    if o.amp is not None:
        I("s_mov_b64 exec, -1")
        I("s_memrealtime s[62:63]")
        I("s_lshl_b32 s46, s15, 10")
        I(f"s_add_u32 s46, s46, {(1<<20) + (3<<16)}")
        I("s_waitcnt vmcnt(0) lgkmcnt(0)")
        I("buffer_load_dword v20, v247, s[32:35], s46 offen sc1")
        I("s_waitcnt vmcnt(0)")
        I("v_readfirstlane_b32 s60, v84")
        I("v_subrev_u32 v20, s60, v20") if False else None
        I("s_nop 1")
        I("v_subrev_u32 v20, s60, v20")
        I("s_mov_b32 s61, 0x80000000")
        for l in range(8):
            I(f"v_readlane_b32 s58, v20, {l}")
            I("s_nop 1")
            I("s_max_i32 s61, s61, s58")
        I("s_add_u32 s60, s60, s61")
        I("s_sub_u32 s61, s62, s60")
        I("s_min_u32 s61, s61, 10000")
        I(f"s_mul_i32 s61, s61, {1+o.amp}")
        L("AMP")
        I("s_memrealtime s[58:59]")
        I("s_waitcnt lgkmcnt(0)")
        I("s_sub_u32 s58, s58, s60")
        I("s_cmp_lt_u32 s58, s61")
        I("s_cbranch_scc1 AMP")
    if o.stamps and o.stw in (o.gw, o.gw+1):
        stamp(12)
        I(f"s_cmp_lg_u32 s17, {o.stw}")
        I("s_cbranch_scc1 DONE2")
        stamp_flush()
    a.C("AL_OFF")
    L("DONE2")
    I("s_endpgm")
    L("CODE_END")
    a('.section .rodata,"a"')
    a(".p2align 6")
    a(descriptor(name, 256, 96, 256))
    hdr = HEADER_COMMENT + f"; @launch grid=(256,1,1) block=(512,1,1) lds=163840\n" + DESIGN_COMMENT
    open(out, "w").write(hdr + a.text())
    if o.al:
        import align8
        align8.run(out, o.alphase)

def mk(nm, **kw):
    o = Opt()
    for k, v in kw.items(): setattr(o, k, v)
    gen(f"exp/{nm}.s", o)

if __name__ == "__main__":
    base = dict(prio=1, hint=0, hint2=6, gw=4, stw=4, sleep2=1, early=(1, 3), wsplit=11, sleep=1)
    mk("x22", **base)
    def v(nm, **kw):
        d = dict(base); d.update(kw); mk(nm, stamps=True, light=True, **d)
    def va(nm, **kw):
        d = dict(base); d.update(kw); mk(nm, amp=8, **d)
    for nm, kw in (("a", {}), ("b", dict(hint=0, hint2=3)), ("c", dict(hint=-1, hint2=4)), ("d", dict(wsplit=12)), ("e", dict(sleep=0)), ("f", dict(sleep=2)), ("g", dict(early=(1,3))), ("h", dict(tlbw=0))):
        v("x22_"+nm, **kw); va("x22_"+nm.upper(), **kw)
    v("x22_p0", thr=12, ftouch=None)
    v("x22_p1")
    v("x22_p2", thr=12)
    v("x22_p3", ftouch=12)
    v("x22_p4", thr=5)
    v("x22_half", exp_half=True)
```
